```python
import torch

def _softmax(x, axis=-1):
    return torch.softmax(x, dim=axis)
def _gelu(x):
    return torch.nn.functional.gelu(x, approximate="tanh")
def _silu(x):
    return torch.nn.functional.silu(x)
def _sigmoid(x):
    return torch.sigmoid(x)
def _layernorm(x, axis=-1, eps=1e-5):
    m = x.mean(dim=axis, keepdim=True)
    v = x.var(dim=axis, keepdim=True, unbiased=False)
    return (x - m) / torch.sqrt(v + eps)
def _scatter_add(tgt, idx, src, axis=0):
    return tgt.clone().index_add_(axis, idx, src)
def _segment_sum(src, seg, n):
    out = torch.zeros((n,) + src.shape[1:], dtype=src.dtype)
    return out.index_add_(0, seg, src)
def _pad(x, pw):
    flat = tuple(v for pair in reversed(pw) for v in pair)
    return torch.nn.functional.pad(x, flat)

kernel_name = 'parallel_sum__sliding_block__moe_arch_mod__prompt'

def setup_inputs():

    _w = (lambda a: (lambda t: t.to(torch.bfloat16) if t.is_floating_point() else t)(torch.as_tensor(a)))
    def _A_setup():
        B, S, D = 1, 2048, 448
        return {
            "x": _w((lambda *s: torch.randn(*s, dtype=torch.bfloat16) * 0.05)(B, S, D)),
            "wqkv": _w((lambda *s: torch.randn(*s, dtype=torch.bfloat16) * 0.05)(D, 3 * D)),
            "wo": _w((lambda *s: torch.randn(*s, dtype=torch.bfloat16) * 0.05)(D, D)),
        }
    _A_in = _A_setup()

    def _B_setup():
        B, S, D, F, C = 1, 2048, 448, 1792, 2
        return {
            "x": _w((lambda *s: torch.randn(*s, dtype=torch.bfloat16) * 0.05)(B, S, D)),
            "w_r": _w((lambda *s: torch.randn(*s, dtype=torch.bfloat16) * 0.05)(D)),
            "w_gate": _w((lambda *s: torch.randn(*s, dtype=torch.bfloat16) * 0.05)(D, F)),
            "w_up": _w((lambda *s: torch.randn(*s, dtype=torch.bfloat16) * 0.05)(D, F)),
            "w_down": _w((lambda *s: torch.randn(*s, dtype=torch.bfloat16) * 0.05)(F, D)),
        }
    _B_in = _B_setup()

    return {
        "A_x": _A_in["x"],
        "A_wqkv": _A_in["wqkv"],
        "A_wo": _A_in["wo"],
        "B_x": _B_in["x"],
        "B_w_r": _B_in["w_r"],
        "B_w_gate": _B_in["w_gate"],
        "B_w_up": _B_in["w_up"],
        "B_w_down": _B_in["w_down"],
    }

def reference(A_x, A_wqkv, A_wo, B_x, B_w_r, B_w_gate, B_w_up, B_w_down):
    def _A_ref(x, wqkv, wo):
        B, S, D = x.shape
        H = 16; Dh = D // H; W = 256
        qkv = (lambda x, *d: x.permute(*d))((x @ wqkv).reshape(B, S, 3, H, Dh), 2, 0, 3, 1, 4)
        q, k, v = qkv[0], qkv[1], qkv[2]
        scores = torch.einsum("bhqd,bhkd->bhqk", q, k) * (Dh ** -0.5)
        idx = torch.arange(S)
        mask = (idx[:, None] - idx[None, :] >= 0) & (idx[:, None] - idx[None, :] < W)
        scores = torch.where(mask[None, None], scores, -1e9)
        p = _softmax(scores, axis=-1)
        o = torch.einsum("bhqk,bhkd->bhqd", p, v)
        return (lambda x, *d: x.permute(*d))(o, 0, 2, 1, 3).reshape(B, S, D) @ wo

    def _B_ref(x, w_r, w_gate, w_up, w_down):
        B, S, D = x.shape
        C = 2
        r = x @ w_r
        idx = torch.argsort(-r, axis=-1)[:, :C]
        idx_e = (lambda x, n, axis: torch.repeat_interleave(x, n, dim=axis))(idx.reshape(B, C, 1), D, axis=2)
        x_sel = (lambda x, i, axis: torch.take_along_dim(x, i, dim=axis))(x, idx_e, axis=1)
        g = _silu(x_sel @ w_gate)
        u = x_sel @ w_up
        y = (g * u) @ w_down
        r_sel = _sigmoid((lambda x, i, axis: torch.take_along_dim(x, i, dim=axis))(r, idx, axis=1))
        y = y * r_sel.reshape(B, C, 1)
        b_off = (torch.arange(B) * S).reshape(B, 1)
        flat_idx = (idx + b_off).reshape(B * C)
        zero = (x * 0.0).reshape(B * S, D)
        upd = _scatter_add(zero, flat_idx, y.reshape(B * C, D), axis=0)
        return x + upd.reshape(B, S, D)

    x = A_x
    xn = _layernorm(x, axis=-1)
    return x + _A_ref(xn, A_wqkv, A_wo) + _B_ref(xn, B_w_r, B_w_gate, B_w_up, B_w_down)
```

```python
import sys

L = []
import re
def I(s):
    m = re.search(r"offset:(\d+)", s)
    if m:
        lim = 4095 if s.startswith(("buffer_", "global_")) else 65535
        assert int(m.group(1)) <= lim, s
    L.append("    " + s)
def LBL(s): L.append(s + ":")
def C(s): L.append("    ; " + s)

WS_QKV   = 0x000000
WS_O     = 0x600000
WS_STATS = 0x7C0000
WS_R     = 0x7C4000
WS_SEL   = 0x7C6000
WS_YP    = 0x7C8000
WS_SIZE  = 0x800000

def srd(dst, lo, hi, size):
    I(f"s_mov_b32 s{dst}, s{lo}")
    I(f"s_and_b32 s{dst+1}, s{hi}, 0xffff")
    I(f"s_mov_b32 s{dst+2}, {size}")
    I(f"s_mov_b32 s{dst+3}, 0x00020000")

def kernel_header(name):
    L.append(f".globl {name}")
    L.append(".p2align 8")
    L.append(f".type {name},@function")
    LBL(name)

def rne_bf16_as_f32(dst, src, tmp=None):
    I(f"v_cvt_pk_bf16_f32 v{dst}, v{src}, v{src}")
    I(f"v_lshlrev_b32 v{dst}, 16, v{dst}")

K1_LDS_STRIDE = 224
K1_LDS = 448 * 224 + 56 * 128

def gen_k1():
    kernel_header("k1_kernel")
    I("s_cmp_ge_u32 s2, 224")
    I("s_cbranch_scc1 K1_done")
    I("s_load_dwordx4 s[4:7], s[0:1], 0")
    I("s_load_dwordx2 s[8:9], s[0:1], 32")
    I("s_load_dwordx2 s[10:11], s[0:1], 80")
    I("s_and_b32 s12, s2, 7")
    I("s_lshl_b32 s12, s12, 1")
    I("s_lshr_b32 s13, s2, 3")
    I("s_and_b32 s13, s13, 1")
    I("s_add_u32 s12, s12, s13")
    I("s_lshr_b32 s14, s2, 4")
    I("s_waitcnt lgkmcnt(0)")
    srd(16, 4, 5, 2048*896)
    srd(20, 6, 7, 448*2688)
    srd(24, 10, 11, WS_SIZE)
    srd(28, 8, 9, 896)
    I("v_and_b32 v1, 63, v0")
    I("v_lshrrev_b32 v2, 6, v0")
    I("v_and_b32 v3, 15, v0")
    I("v_bfe_u32 v4, v0, 4, 2")
    I("s_lshl_b32 s15, s12, 7")
    I("v_lshlrev_b32 v5, 4, v2")
    I("v_add3_u32 v5, v5, v3, s15")
    I("v_mul_u32_u24 v6, 896, v5")
    I("v_lshl_add_u32 v6, v4, 4, v6")
    XF = 64
    for s in range(14):
        I(f"buffer_load_dwordx4 v[{XF+4*s}:{XF+4*s+3}], v6, s[16:19], 0 offen offset:{64*s}")
    WT = 128
    WA = 176
    I("s_mul_i32 s32, s14, 192")
    I("s_mov_b32 s33, 43691")
    for p in range(11):
        if p == 10:
            I("v_readfirstlane_b32 s34, v2")
            I("s_nop 3")
            I("s_cmp_ge_u32 s34, 4")
            I("s_cbranch_scc1 K1_skip_w10")
        I(f"v_add_u32 v7, {512*p}, v0")
        I("v_mul_u32_u24 v8, s33, v7")
        I("v_lshrrev_b32 v8, 19, v8")
        I("v_mul_u32_u24 v9, 12, v8")
        I("v_sub_u32 v9, v7, v9")
        I("v_mul_u32_u24 v10, 2688, v8")
        I("v_lshl_add_u32 v10, v9, 4, v10")
        I("v_add_u32 v10, s32, v10")
        I(f"buffer_load_dwordx4 v[{WT+4*p}:{WT+4*p+3}], v10, s[20:23], 0 offen")
        I("v_mul_u32_u24 v11, 224, v8")
        I("v_lshrrev_b32 v12, 3, v8")
        I("v_lshl_add_u32 v11, v12, 7, v11")
        I(f"v_lshl_add_u32 v{WA+p}, v9, 4, v11")
        if p == 10:
            LBL("K1_skip_w10")
    I("v_mov_b32 v12, 0x3f803f80")
    I("v_mov_b32 v13, 0x3f803f80")
    I("v_mov_b32 v14, 0x3f803f80")
    I("v_mov_b32 v15, 0x3f803f80")
    for r in range(16, 24):
        I(f"v_mov_b32 v{r}, 0")
    I("s_waitcnt vmcnt(11)")
    for s in range(14):
        I(f"v_mfma_f32_16x16x32_bf16 v[16:19], v[{XF+4*s}:{XF+4*s+3}], v[{XF+4*s}:{XF+4*s+3}], v[16:19]")
        I(f"v_mfma_f32_16x16x32_bf16 v[20:23], v[{XF+4*s}:{XF+4*s+3}], v[12:15], v[20:23]")
    I("s_nop 15")
    I("v_and_b32 v24, 3, v3")
    I("v_cmp_eq_u32 vcc, 1, v24")
    I("s_nop 1")
    I("v_cndmask_b32 v25, v16, v17, vcc")
    I("v_cndmask_b32 v26, v20, v21, vcc")
    I("v_cmp_eq_u32 vcc, 2, v24")
    I("s_nop 1")
    I("v_cndmask_b32 v25, v25, v18, vcc")
    I("v_cndmask_b32 v26, v26, v22, vcc")
    I("v_cmp_eq_u32 vcc, 3, v24")
    I("s_nop 1")
    I("v_cndmask_b32 v25, v25, v19, vcc")
    I("v_cndmask_b32 v26, v26, v23, vcc")
    I("v_lshrrev_b32 v27, 2, v3")
    I("v_lshl_add_u32 v27, v27, 4, v3")
    I("v_lshlrev_b32 v27, 2, v27")
    I("ds_bpermute_b32 v25, v27, v25")
    I("ds_bpermute_b32 v26, v27, v26")
    I("s_waitcnt lgkmcnt(0)")
    I("v_mov_b32 v28, 0x3b124925")
    I("v_mul_f32 v26, v26, v28")
    I("v_mul_f32 v25, v25, v28")
    I("v_fma_f32 v25, -v26, v26, v25")
    I("v_max_f32 v25, 0, v25")
    rne_bf16_as_f32(26, 26)
    rne_bf16_as_f32(25, 25)
    I("v_add_f32 v25, 0x3727c5ac, v25")
    rne_bf16_as_f32(25, 25)
    I("v_sqrt_f32 v25, v25")
    I("s_nop 0")
    rne_bf16_as_f32(25, 25)
    I("v_rcp_f32 v29, v25")
    I("s_cmp_lg_u32 s14, 0")
    I("s_cbranch_scc1 K1_nostats")
    I("v_cmp_eq_u32 vcc, 0, v4")
    I("s_and_saveexec_b64 s[36:37], vcc")
    I("v_mov_b32 v30, v26")
    I("v_mov_b32 v31, v25")
    I(f"v_lshlrev_b32 v32, 3, v5")
    I(f"buffer_store_dwordx2 v[30:31], v32, s[24:27], 0 offen offset:0 ; placeholder")
    L.pop()
    I(f"v_add_u32 v32, {WS_STATS}, v32")
    I("buffer_store_dwordx2 v[30:31], v32, s[24:27], 0 offen")
    I("s_mov_b64 exec, s[36:37]")
    LBL("K1_nostats")
    I("v_sub_f32 v30, 0, v26")
    I("v_mov_b32 v31, v30")
    I("v_mov_b32 v32, v29")
    I("v_mov_b32 v33, v29")
    for r in range(XF, XF+56):
        t = 34 + 2*(r & 1)
        I(f"v_lshlrev_b32 v{t}, 16, v{r}")
        I(f"v_and_b32 v{t+1}, 0xffff0000, v{r}")
        I(f"v_pk_add_f32 v[{t}:{t+1}], v[{t}:{t+1}], v[30:31]")
        I(f"v_pk_mul_f32 v[{t}:{t+1}], v[{t}:{t+1}], v[32:33]")
        I(f"v_cvt_pk_bf16_f32 v{r}, v{t}, v{t+1}")
    I("s_cmp_lg_u32 s14, 0")
    I("s_cbranch_scc1 K1_nor")
    I("v_lshlrev_b32 v38, 4, v4")
    RT = 192
    for s in range(14):
        I(f"buffer_load_dwordx4 v[{RT+4*s}:{RT+4*s+3}], v38, s[28:31], 0 offen offset:{64*s}")
    for r in range(40, 44):
        I(f"v_mov_b32 v{r}, 0")
    I("s_waitcnt vmcnt(0)")
    for s in range(14):
        I(f"v_mfma_f32_16x16x32_bf16 v[40:43], v[{XF+4*s}:{XF+4*s+3}], v[{RT+4*s}:{RT+4*s+3}], v[40:43]")
    I("s_nop 15")
    for r in range(40, 44):
        rne_bf16_as_f32(r, r)
    I("v_cmp_eq_u32 vcc, 0, v3")
    I("s_and_saveexec_b64 s[36:37], vcc")
    I("v_lshlrev_b32 v38, 4, v2")
    I("v_lshl_add_u32 v38, v4, 2, v38")
    I("v_add_u32 v38, s15, v38")
    I("v_lshlrev_b32 v38, 2, v38")
    I(f"v_add_u32 v38, {WS_R}, v38")
    I("buffer_store_dwordx4 v[40:43], v38, s[24:27], 0 offen")
    I("s_mov_b64 exec, s[36:37]")
    LBL("K1_nor")
    I("s_waitcnt vmcnt(0)")
    for p in range(10):
        I(f"ds_write_b128 v{WA+p}, v[{WT+4*p}:{WT+4*p+3}]")
    I("s_cmp_ge_u32 s34, 4")
    I("s_cbranch_scc1 K1_skip_w10b")
    I(f"ds_write_b128 v{WA+10}, v[{WT+40}:{WT+43}]")
    LBL("K1_skip_w10b")
    I("s_waitcnt lgkmcnt(0)")
    I("s_barrier")
    I("v_mul_u32_u24 v44, 1920, v4")
    I("v_lshrrev_b32 v45, 2, v3")
    I("v_mul_u32_u24 v45, 224, v45")
    I("v_add_u32 v44, v44, v45")
    I("v_and_b32 v45, 3, v3")
    I("v_lshl_add_u32 v44, v45, 3, v44")
    I(f"v_add_u32 v45, {7*7680}, v44")
    ACC = 200
    for r in range(ACC, ACC+24):
        I(f"v_mov_b32 v{r}, 0")
    BF = [128, 152]
    def rd(s):
        base = 44 if s < 7 else 45
        so = (s if s < 7 else s-7) * 7680
        for t in range(6):
            d = BF[s & 1] + 4*t
            I(f"ds_read_b64_tr_b16 v[{d}:{d+1}], v{base} offset:{so+32*t}")
            I(f"ds_read_b64_tr_b16 v[{d+2}:{d+3}], v{base} offset:{so+32*t+896}")
    rd(0)
    for s in range(14):
        if s < 13:
            rd(s+1)
            I("s_waitcnt lgkmcnt(12)")
        else:
            I("s_waitcnt lgkmcnt(0)")
        for t in range(6):
            d = BF[s & 1] + 4*t
            I(f"v_mfma_f32_16x16x32_bf16 v[{ACC+4*t}:{ACC+4*t+3}], v[{d}:{d+3}], v[{XF+4*s}:{XF+4*s+3}], v[{ACC+4*t}:{ACC+4*t+3}]")
    I("s_nop 15")
    I("s_mul_i32 s35, s14, 24")
    I("v_add_u32 v46, s35, v4")
    I("s_movk_i32 s38, 9363")
    for t in range(6):
        I(f"v_add_u32 v47, {4*t}, v46")
        I("v_mul_u32_u24 v48, s38, v47")
        I("v_lshrrev_b32 v48, 16, v48")
        I("v_mul_u32_u24 v49, 7, v48")
        I("v_sub_u32 v49, v47, v49")
        I("v_lshl_add_u32 v48, v48, 11, v5")
        I("v_lshlrev_b32 v48, 6, v48")
        I("v_lshl_add_u32 v48, v49, 3, v48")
        I(f"v_cvt_pk_bf16_f32 v50, v{ACC+4*t}, v{ACC+4*t+1}")
        I(f"v_cvt_pk_bf16_f32 v51, v{ACC+4*t+2}, v{ACC+4*t+3}")
        I("buffer_store_dwordx2 v[50:51], v48, s[24:27], 0 offen")
        I("s_nop 1")
    LBL("K1_done")
    I("s_endpgm")

def descriptor(name, vgpr, sgpr=64):
    L.append(".section .rodata,\"a\"")
    L.append(".p2align 6")
    L.append(f".amdhsa_kernel {name}")
    L.append(f"  .amdhsa_next_free_vgpr {vgpr}")
    L.append(f"  .amdhsa_next_free_sgpr {sgpr}")
    L.append(f"  .amdhsa_accum_offset {((vgpr+3)//4)*4}")
    L.append("  .amdhsa_group_segment_fixed_size 0")
    L.append("  .amdhsa_kernarg_size 88")
    L.append("  .amdhsa_user_sgpr_count 2")
    L.append("  .amdhsa_user_sgpr_kernarg_segment_ptr 1")
    L.append("  .amdhsa_system_sgpr_workgroup_id_x 1")
    L.append(".end_amdhsa_kernel")

HEADER = """; Kernarg layout for this problem (88 bytes, ptrs only, base s[0:1]):
"""

def emit(path, kernels):
    del L[:]
    out = [HEADER.rstrip()]
    for (name, grid, block, lds) in kernels:
        out.append(f"; @launch kernel={name} grid=({grid},1,1) block=({block},1,1) lds={lds}")
    out.append('.amdgcn_target "amdgcn-amd-amdhsa--gfx950"')
    out.append(".text")
    for g in GENS:
        g()
    out += L
    open(path, "w").write("\n".join(out) + "\n")

if __name__ == "__main__":
    GENS = [gen_k1, lambda: descriptor("k1_kernel", 256)]
    emit(sys.argv[1] if len(sys.argv) > 1 else "k.s", [("k1_kernel", 224, 512, K1_LDS)])
```

```python
from gen import *
import gen

K2_LDS = 49152
N_MOE = 56

def gen_k2():
    kernel_header("k2_kernel")
    I(f"s_cmp_ge_u32 s2, {N_MOE+256}")
    I("s_cbranch_scc1 K2_done")
    I("s_load_dwordx2 s[4:5], s[0:1], 0")
    I("s_load_dwordx4 s[8:11], s[0:1], 40")
    I("s_load_dwordx2 s[12:13], s[0:1], 56")
    I("s_load_dwordx2 s[14:15], s[0:1], 80")
    I("s_waitcnt lgkmcnt(0)")
    srd(24, 14, 15, WS_SIZE)
    I(f"s_cmp_lt_u32 s2, {N_MOE}")
    I("s_cbranch_scc1 K2_moe")
    I(f"s_sub_u32 s16, s2, {N_MOE}")
    I("s_lshr_b32 s17, s16, 4")
    I("s_and_b32 s18, s16, 15")
    I("v_and_b32 v1, 63, v0")
    I("v_lshrrev_b32 v2, 6, v0")
    I("v_and_b32 v3, 31, v0")
    I("v_bfe_u32 v4, v0, 5, 1")
    I("v_and_b32 v5, 3, v0")
    I("v_lshrrev_b32 v6, 2, v0")
    I("s_lshl_b32 s19, s18, 7")
    I("s_sub_u32 s20, s19, 256")
    I("s_add_u32 s21, s17, 16")
    I("s_lshl_b32 s21, s21, 17")
    I("v_cmp_eq_u32 s[40:41], 3, v5")
    for p in range(6):
        I(f"v_add_u32 v7, {64*p}, v6")
        I("v_add_u32 v7, s20, v7")
        I("v_max_i32 v7, 0, v7")
        I("v_lshlrev_b32 v7, 6, v7")
        I("v_lshl_add_u32 v7, v5, 4, v7")
        I("v_add_u32 v7, s21, v7")
        I(f"buffer_load_dwordx4 v[{64+8*p}:{64+8*p+3}], v7, s[24:27], 0 offen")
        I(f"v_add_u32 v7, 0x200000, v7")
        I(f"buffer_load_dwordx4 v[{64+8*p+4}:{64+8*p+7}], v7, s[24:27], 0 offen")
    I("v_lshl_add_u32 v8, v2, 5, v3")
    I("v_add_u32 v8, s19, v8")
    I("s_lshl_b32 s22, s17, 11")
    I("v_add_u32 v9, s22, v8")
    I("v_lshlrev_b32 v9, 6, v9")
    I("v_lshl_add_u32 v9, v4, 4, v9")
    I("buffer_load_dwordx4 v[16:19], v9, s[24:27], 0 offen")
    I("buffer_load_dwordx4 v[20:23], v9, s[24:27], 0 offen offset:32")
    I("v_lshrrev_b32 v10, 2, v6")
    I("v_and_b32 v10, 3, v10")
    I("v_xor_b32 v10, v10, v5")
    I("v_lshlrev_b32 v10, 4, v10")
    I("v_lshl_add_u32 v10, v6, 6, v10")
    I("v_lshlrev_b32 v11, 4, v5")
    I("v_lshl_add_u32 v11, v6, 6, v11")
    I("v_add_u32 v11, 24576, v11")
    I("v_mov_b32 v12, 0")
    I("v_mov_b32 v13, 0x3f80")
    I("s_waitcnt vmcnt(0)")
    for p in range(6):
        a = 64+8*p
        I(f"v_cndmask_b32 v{a+2}, v{a+2}, v12, s[40:41]")
        I(f"v_cndmask_b32 v{a+3}, v{a+3}, v12, s[40:41]")
        I(f"v_cndmask_b32 v{a+6}, v{a+6}, v13, s[40:41]")
        I(f"v_cndmask_b32 v{a+7}, v{a+7}, v12, s[40:41]")
        I(f"ds_write_b128 v10, v[{a}:{a+3}] offset:{4096*p}")
        I(f"ds_write_b128 v11, v[{a+4}:{a+7}] offset:{4096*p}")
    I("v_cmp_eq_u32 vcc, 1, v4")
    I("s_nop 1")
    I("v_cndmask_b32 v22, v22, v12, vcc")
    I("v_cndmask_b32 v23, v23, v12, vcc")
    I("s_waitcnt lgkmcnt(0)")
    I("s_barrier")
    I("v_lshrrev_b32 v14, 2, v3")
    I("v_and_b32 v14, 3, v14")
    I("v_xor_b32 v15, v14, v4")
    I("v_lshlrev_b32 v15, 4, v15")
    I("v_lshl_add_u32 v15, v8, 6, v15")
    L.pop()
    I("v_lshl_add_u32 v56, v2, 5, v3")
    I("v_lshl_add_u32 v15, v56, 6, v15")
    I("v_add_u32 v57, 2, v4")
    I("v_xor_b32 v57, v57, v14")
    I("v_lshlrev_b32 v57, 4, v57")
    I("v_lshl_add_u32 v57, v56, 6, v57")
    I("v_readfirstlane_b32 s23, v2")
    I("s_lshl_b32 s28, s18, 2")
    I("s_nop 3")
    I("s_add_u32 s28, s28, s23")
    I("s_sub_i32 s28, 8, s28")
    I("s_max_i32 s28, s28, 0")
    I("v_mov_b32 v58, 0xf149f2ca")
    S = 64
    def kread(j):
        b = 24 + 8*(j & 1)
        I(f"ds_read_b128 v[{b}:{b+3}], v15 offset:{2048*j}")
        I(f"ds_read_b128 v[{b+4}:{b+7}], v57 offset:{2048*j}")
    kread(0)
    for j in range(9):
        if j < 8:
            kread(j+1)
            I("s_waitcnt lgkmcnt(2)")
        else:
            I("s_waitcnt lgkmcnt(0)")
        b = 24 + 8*(j & 1)
        sj = S + 16*j
        if j < 8:
            I(f"s_cmp_gt_u32 s28, {j}")
            I(f"s_cbranch_scc1 K2_inv{j}")
        I(f"v_mfma_f32_32x32x16_bf16 v[{sj}:{sj+15}], v[{b}:{b+3}], v[16:19], 0")
        I(f"v_mfma_f32_32x32x16_bf16 v[{sj}:{sj+15}], v[{b+4}:{b+7}], v[20:23], v[{sj}:{sj+15}]")
        if j < 8:
            I(f"s_branch K2_ok{j}")
            LBL(f"K2_inv{j}")
            for i in range(16):
                I(f"v_mov_b32 v{sj+i}, v58")
            LBL(f"K2_ok{j}")
    I("s_nop 15")
    I("s_nop 7")
    I("v_lshlrev_b32 v59, 2, v4")
    I("v_sub_u32 v59, v3, v59")
    for i in range(16):
        c = 8*(i >> 2) + (i & 3)
        I(f"v_cmp_gt_i32 vcc, {c}, v59")
        I("s_nop 1")
        I(f"v_cndmask_b32 v{S+i}, v58, v{S+i}, vcc")
        I(f"v_cndmask_b32 v{S+128+i}, v{S+128+i}, v58, vcc")
    I(f"v_max_f32 v60, v{S}, v{S+1}")
    for i in range(2, 144, 2):
        I(f"v_max3_f32 v60, v60, v{S+i}, v{S+i+1}")
    I("v_mov_b32 v61, v60")
    I("s_nop 1")
    I("v_permlane32_swap_b32 v60, v61")
    I("v_max_f32 v60, v60, v61")
    I("v_mov_b32 v62, 0x3e8b9c17 ; placeholder")
    L.pop()
    import struct, math
    cc = (28 ** -0.5) * math.log2(math.e)
    cbits = struct.unpack("<I", struct.pack("<f", cc))[0]
    I(f"s_mov_b32 s29, 0x{cbits:08x}")
    I("v_mul_f32 v60, s29, v60")
    I("v_sub_f32 v60, 0, v60")
    for i in range(144):
        I(f"v_fma_f32 v{S+i}, v{S+i}, s29, v60")
        I(f"v_exp_f32 v{S+i}, v{S+i}")
    I("s_nop 0")
    for j in range(9):
        for n in range(8):
            I(f"v_cvt_pk_bf16_f32 v{S+16*j+n}, v{S+16*j+2*n}, v{S+16*j+2*n+1}")
    for r in range(208, 224):
        I(f"v_mov_b32 v{r}, 0")
    I("v_bfe_u32 v56, v0, 4, 1")
    I("v_and_b32 v57, 15, v0")
    I("v_lshrrev_b32 v59, 2, v57")
    I("v_lshl_add_u32 v59, v4, 2, v59")
    I("v_lshl_add_u32 v59, v2, 5, v59")
    I("v_lshlrev_b32 v59, 6, v59")
    I("v_lshl_add_u32 v59, v56, 5, v59")
    I("v_and_b32 v57, 3, v57")
    I("v_lshl_add_u32 v59, v57, 3, v59")
    I("v_add_u32 v59, 24576, v59")
    def vread(j):
        b = 24 + 8*(j & 1)
        for m in range(2):
            I(f"ds_read_b64_tr_b16 v[{b+4*m}:{b+4*m+1}], v59 offset:{2048*j+1024*m}")
            I(f"ds_read_b64_tr_b16 v[{b+4*m+2}:{b+4*m+3}], v59 offset:{2048*j+1024*m+512}")
    vread(0)
    for j in range(9):
        if j < 8:
            vread(j+1)
            I("s_waitcnt lgkmcnt(4)")
        else:
            I("s_waitcnt lgkmcnt(0)")
        b = 24 + 8*(j & 1)
        for m in range(2):
            I(f"v_mfma_f32_32x32x16_bf16 v[208:223], v[{b+4*m}:{b+4*m+3}], v[{S+16*j+4*m}:{S+16*j+4*m+3}], v[208:223]")
    I("s_nop 15")
    I("s_nop 7")
    I("v_mov_b32 v60, v220")
    I("v_mov_b32 v61, v220")
    I("s_nop 1")
    I("v_permlane32_swap_b32 v60, v61")
    I("v_rcp_f32 v61, v61")
    I("v_mul_u32_u24 v9, 896, v8")
    I("s_mul_i32 s30, s17, 56")
    I("v_add_u32 v9, s30, v9")
    I("v_lshl_add_u32 v9, v4, 3, v9")
    I(f"v_add_u32 v9, {WS_O}, v9")
    I("s_nop 0")
    for a in range(4):
        for b in range(4):
            I(f"v_mul_f32 v{208+4*a+b}, v{208+4*a+b}, v61")
        I(f"v_cvt_pk_bf16_f32 v{24+2*a}, v{208+4*a}, v{208+4*a+1}")
        I(f"v_cvt_pk_bf16_f32 v{24+2*a+1}, v{208+4*a+2}, v{208+4*a+3}")
    for a in range(3):
        I(f"buffer_store_dwordx2 v[{24+2*a}:{24+2*a+1}], v9, s[24:27], 0 offen offset:{16*a}")
    I("v_cmp_eq_u32 vcc, 0, v4")
    I("s_and_saveexec_b64 s[36:37], vcc")
    I("buffer_store_dwordx2 v[30:31], v9, s[24:27], 0 offen offset:48")
    I("s_branch K2_done")
    LBL("K2_moe")
    srd(16, 4, 5, 2048*896)
    srd(20, 8, 9, 448*3584)
    srd(28, 10, 11, 448*3584)
    srd(32, 12, 13, 1792*896)
    I("v_and_b32 v1, 63, v0")
    I("v_and_b32 v2, 3, v0")
    I("v_lshrrev_b32 v3, 2, v0")
    I("v_lshlrev_b32 v4, 4, v1")
    I(f"v_add_u32 v4, {WS_R}, v4")
    I("v_add_u32 v5, 4096, v4")
    for p in range(8):
        I(f"buffer_load_dwordx4 v[{160+4*p}:{160+4*p+3}], v{4 if p < 4 else 5}, s[24:27], 0 offen offset:{1024*(p&3)}")
    I("s_lshl_b32 s36, s2, 6")
    I("v_mul_u32_u24 v5, 3584, v3")
    I("v_lshl_add_u32 v5, v2, 4, v5")
    I("v_add_u32 v5, s36, v5")
    I(f"s_mov_b32 s37, {64*3584}")
    G = 64; U = 96
    I("s_mov_b32 s38, 0")
    for p in range(7):
        I(f"buffer_load_dwordx4 v[{G+4*p}:{G+4*p+3}], v5, s[20:23], s38 offen")
        I(f"buffer_load_dwordx4 v[{U+4*p}:{U+4*p+3}], v5, s[28:31], s38 offen")
        if p < 6:
            I("s_add_u32 s38, s38, s37")
    I("v_mul_u32_u24 v6, 1171, v0")
    I("v_lshrrev_b32 v6, 16, v6")
    I("v_mul_u32_u24 v7, 56, v6")
    I("v_sub_u32 v7, v0, v7")
    I("s_lshl_b32 s39, s2, 5")
    I("v_lshl_add_u32 v8, v6, 3, s39")
    I("v_mul_u32_u24 v8, 896, v8")
    I("v_lshl_add_u32 v8, v7, 4, v8")
    I("v_cmp_gt_u32 vcc, 224, v0")
    I("v_mov_b32 v9, 0x7ffffff0")
    I("s_nop 0")
    I("v_cndmask_b32 v8, v9, v8, vcc")
    D = 128
    I("v_add_u32 v9, 3584, v8")
    for i in range(8):
        I(f"buffer_load_dwordx4 v[{D+4*i}:{D+4*i+3}], v{8 if i < 4 else 9}, s[32:35], 0 offen offset:{896*(i&3)}")
    I("s_waitcnt vmcnt(22)")
    I("v_lshlrev_b32 v10, 2, v1")
    I("v_sub_u32 v10, 2047, v10")
    I("s_mov_b32 s40, 0xffff0000")
    for p in range(8):
        for e in range(4):
            r = 160 + 4*p + e
            I(f"v_ashrrev_i32 v11, 31, v{r}")
            I(f"v_or_b32 v11, 0x80000000, v11")
            I(f"v_xor_b32 v{r}, v{r}, v11")
            I(f"v_subrev_u32 v11, {256*p+e}, v10")
            I(f"v_and_or_b32 v{r}, v{r}, s40, v11")
    def wave_max(dst):
        for off in (0x041F, 0x081F, 0x101F, 0x201F, 0x401F):
            I(f"ds_swizzle_b32 v12, v{dst} offset:0x{off:04x}")
            I("s_waitcnt lgkmcnt(0)")
            I(f"v_max_u32 v{dst}, v{dst}, v12")
        I(f"v_mov_b32 v12, v{dst}")
        I("s_nop 1")
        I(f"v_permlane32_swap_b32 v{dst}, v12")
        I(f"v_max_u32 v{dst}, v{dst}, v12")
    I("v_max_u32 v13, v160, v161")
    for r in range(162, 192):
        I(f"v_max_u32 v13, v13, v{r}")
    wave_max(13)
    I("v_mov_b32 v14, 0")
    for r in range(160, 192):
        I(f"v_cmp_ne_u32 vcc, v13, v{r}")
        I("s_nop 1")
        I(f"v_cndmask_b32 v15, 0, v{r}, vcc")
        I("v_max_u32 v14, v14, v15")
    wave_max(14)
    I("s_nop 0")
    I("v_readfirstlane_b32 s41, v13")
    I("v_readfirstlane_b32 s42, v14")
    I("s_nop 3")
    for (s, d_idx, d_val) in ((41, 43, 45), (42, 44, 46)):
        I(f"s_and_b32 s{d_idx}, s{s}, 0xffff")
        I(f"s_sub_u32 s{d_idx}, 2047, s{d_idx}")
        I(f"s_and_b32 s{d_val}, s{s}, 0xffff0000")
        I(f"s_cmp_ge_u32 s{d_val}, 0x80000000")
        I(f"s_cselect_b32 s47, 0x80000000, 0xffffffff")
        I(f"s_xor_b32 s{d_val}, s{d_val}, s47")
        I(f"s_and_b32 s{d_val}, s{d_val}, 0xffff0000")
    XS = 32768
    I("v_cmp_gt_u32 vcc, 224, v0")
    I("s_and_saveexec_b64 s[48:49], vcc")
    for tok, sidx in ((0, 43), (1, 44)):
        I(f"s_mul_i32 s50, s{sidx}, 896")
        I(f"v_lshlrev_b32 v11, 2, v0")
        I(f"buffer_load_dword v{16+tok}, v11, s[16:19], s50 offen")
        I(f"s_lshl_b32 s51, s{sidx}, 3")
        I(f"s_add_u32 s51, s51, {WS_STATS}")
        I(f"v_mov_b32 v12, s51")
        I(f"buffer_load_dwordx2 v[{18+2*tok}:{19+2*tok}], v12, s[24:27], 0 offen")
    I("s_waitcnt vmcnt(0)")
    for tok in range(2):
        m, s = 18+2*tok, 19+2*tok
        I(f"v_rcp_f32 v22, v{s}")
        I(f"v_lshlrev_b32 v23, 16, v{16+tok}")
        I(f"v_and_b32 v24, 0xffff0000, v{16+tok}")
        I(f"v_sub_f32 v23, v23, v{m}")
        I(f"v_sub_f32 v24, v24, v{m}")
        I(f"v_cvt_pk_bf16_f32 v25, v23, v24")
        I(f"v_lshlrev_b32 v23, 16, v25")
        I(f"v_and_b32 v24, 0xffff0000, v25")
        I(f"v_mul_f32 v23, v23, v22")
        I(f"v_mul_f32 v24, v24, v22")
        I(f"v_cvt_pk_bf16_f32 v25, v23, v24")
        I(f"v_lshlrev_b32 v26, 16, v25")
        I(f"v_and_b32 v27, 0xffff0000, v25")
        I(f"v_lshlrev_b32 v28, 3, v0")
        I(f"ds_write_b64 v28, v[26:27] offset:{XS+1792*tok}")
    I("s_mov_b64 exec, s[48:49]")
    I("s_waitcnt lgkmcnt(0)")
    I("s_barrier")
    for r in range(192, 224):
        I(f"v_mov_b32 v{r}, 0")
    I("v_lshlrev_b32 v11, 2, v3")
    for p in range(7):
        I(f"ds_read_b32 v12, v11 offset:{XS+256*p}")
        I(f"ds_read_b32 v13, v11 offset:{XS+1792+256*p}")
        I("s_waitcnt lgkmcnt(0)")
        for mat, base in ((0, G), (1, U)):
            for q in range(4):
                r = base + 4*p + q
                I(f"v_lshlrev_b32 v14, 16, v{r}")
                I(f"v_and_b32 v15, 0xffff0000, v{r}")
                a0 = 192 + 16*mat + 2*q
                a1 = a0 + 8
                I(f"v_fmac_f32 v{a0}, v12, v14")
                I(f"v_fmac_f32 v{a0+1}, v12, v15")
                I(f"v_fmac_f32 v{a1}, v13, v14")
                I(f"v_fmac_f32 v{a1+1}, v13, v15")
    I("v_lshlrev_b32 v11, 7, v0")
    for q in range(8):
        I(f"ds_write_b128 v11, v[{192+4*q}:{192+4*q+3}] offset:{16*q}")
    I("s_waitcnt lgkmcnt(0)")
    I("s_barrier")
    I("v_cmp_gt_u32 vcc, 128, v0")
    I("s_and_saveexec_b64 s[48:49], vcc")
    I("s_cbranch_execz K2_moe_r1")
    I("v_lshlrev_b32 v11, 2, v0")
    I("v_mov_b32 v12, 0")
    for b in range(4):
        for k in range(16):
            I(f"ds_read_b32 v{192+k}, v11 offset:{512*(16*b+k)}")
        I("s_waitcnt lgkmcnt(0)")
        for k in range(16):
            I(f"v_add_f32 v12, v12, v{192+k}")
    rne_bf16_as_f32(12, 12)
    I("v_lshrrev_b32 v13, 5, v0")
    I("v_and_b32 v14, 7, v0")
    I("v_lshl_add_u32 v13, v13, 3, v14")
    I("v_bfe_u32 v14, v0, 3, 2")
    I("v_lshl_add_u32 v13, v14, 5, v13")
    I("v_lshlrev_b32 v13, 2, v13")
    I("ds_write_b32 v13, v12 offset:36864")
    LBL("K2_moe_r1")
    I("s_mov_b64 exec, s[48:49]")
    I("s_waitcnt lgkmcnt(0)")
    I("s_barrier")
    I("v_cmp_gt_u32 vcc, 64, v0")
    I("s_and_saveexec_b64 s[48:49], vcc")
    I("s_cbranch_execz K2_moe_r2")
    I("v_lshlrev_b32 v13, 2, v0")
    I("ds_read_b32 v12, v13 offset:36864")
    I("ds_read_b32 v14, v13 offset:37120")
    I("s_waitcnt lgkmcnt(0)")
    I("v_mul_f32 v15, 0xbfb8aa3b, v12")
    I("v_exp_f32 v15, v15")
    I("s_nop 0")
    I("v_add_f32 v15, 1.0, v15")
    I("v_rcp_f32 v15, v15")
    I("s_nop 0")
    I("v_mul_f32 v12, v12, v15")
    rne_bf16_as_f32(12, 12)
    I("v_mul_f32 v12, v12, v14")
    rne_bf16_as_f32(12, 12)
    I("ds_write_b32 v13, v12 offset:37376")
    LBL("K2_moe_r2")
    I("s_mov_b64 exec, s[48:49]")
    I("s_waitcnt lgkmcnt(0)")
    I("s_barrier")
    for r in range(192, 208):
        I(f"v_mov_b32 v{r}, 0")
    I("v_lshlrev_b32 v11, 5, v6")
    for i in range(8):
        I(f"ds_read_b32 v12, v11 offset:{37376+4*i}")
        I(f"ds_read_b32 v13, v11 offset:{37376+128+4*i}")
        I("s_waitcnt lgkmcnt(0)")
        for q in range(4):
            r = D + 4*i + q
            I(f"v_lshlrev_b32 v14, 16, v{r}")
            I(f"v_and_b32 v15, 0xffff0000, v{r}")
            I(f"v_fmac_f32 v{192+2*q}, v12, v14")
            I(f"v_fmac_f32 v{192+2*q+1}, v12, v15")
            I(f"v_fmac_f32 v{200+2*q}, v13, v14")
            I(f"v_fmac_f32 v{200+2*q+1}, v13, v15")
    I("s_and_saveexec_b64 s[48:49], -1")
    I("v_cmp_gt_u32 vcc, 224, v0")
    I("s_and_b64 exec, exec, vcc")
    I("v_mul_u32_u24 v11, 3584, v6")
    I("v_lshl_add_u32 v11, v7, 5, v11")
    I("ds_write_b128 v11, v[192:195]")
    I("ds_write_b128 v11, v[196:199] offset:16")
    I("ds_write_b128 v11, v[200:203] offset:1792")
    I("ds_write_b128 v11, v[204:207] offset:1808")
    I("s_waitcnt lgkmcnt(0)")
    I("s_mov_b64 exec, s[48:49]")
    I("s_barrier")
    I("v_cmp_gt_u32 vcc, 224, v0")
    I("s_and_saveexec_b64 s[48:49], vcc")
    I("v_lshlrev_b32 v11, 4, v0")
    for fg in range(4):
        I(f"ds_read_b128 v[{192+4*fg}:{192+4*fg+3}], v11 offset:{3584*fg}")
    I("s_waitcnt lgkmcnt(0)")
    for e in range(4):
        I(f"v_add_f32 v{192+e}, v{192+e}, v{196+e}")
        I(f"v_add_f32 v{200+e}, v{200+e}, v{204+e}")
        I(f"v_add_f32 v{192+e}, v{192+e}, v{200+e}")
    I("s_mul_i32 s50, s2, 3584")
    I(f"s_add_u32 s50, s50, {WS_YP}")
    I("v_add_u32 v11, s50, v11")
    I("buffer_store_dwordx4 v[192:195], v11, s[24:27], 0 offen")
    I("s_mov_b64 exec, s[48:49]")
    I("s_cmp_lg_u32 s2, 0")
    I("s_cbranch_scc1 K2_done")
    I("v_cmp_eq_u32 vcc, 0, v0")
    I("s_and_saveexec_b64 s[48:49], vcc")
    I("v_mov_b32 v12, s43")
    I("v_mov_b32 v13, s44")
    for k, sv in ((14, 45), (15, 46)):
        I(f"v_mov_b32 v{k}, s{sv}")
        I(f"v_mul_f32 v{k}, 0xbfb8aa3b, v{k}")
        I(f"v_exp_f32 v{k}, v{k}")
        I("s_nop 0")
        I(f"v_add_f32 v{k}, 1.0, v{k}")
        I(f"v_rcp_f32 v{k}, v{k}")
        I("s_nop 0")
        rne_bf16_as_f32(k, k)
    I(f"v_mov_b32 v11, {WS_SEL}")
    I("buffer_store_dwordx4 v[12:15], v11, s[24:27], 0 offen")
    LBL("K2_done")
    I("s_endpgm")

if __name__ == "__main__":
    gen.GENS = [gen_k1, gen_k2, lambda: descriptor("k1_kernel", 256), lambda: descriptor("k2_kernel", 256)]
    emit(sys.argv[1], [("k1_kernel", 224, 512, K1_LDS), ("k2_kernel", N_MOE+256, 256, K2_LDS)])
```

```python
from gen import *
from gen2 import *
import gen

K3_STRIDE = 160
K3_WO = 448*160 + 56*128
K3_LDS = K3_WO + 512

def gen_k3():
    kernel_header("k3_kernel")
    I("s_cmp_ge_u32 s2, 224")
    I("s_cbranch_scc1 K3_done")
    I("s_load_dwordx2 s[4:5], s[0:1], 0")
    I("s_load_dwordx2 s[6:7], s[0:1], 16")
    I("s_load_dwordx2 s[8:9], s[0:1], 64")
    I("s_load_dwordx2 s[10:11], s[0:1], 80")
    I("s_and_b32 s12, s2, 31")
    I("s_lshr_b32 s13, s2, 5")
    I("s_waitcnt lgkmcnt(0)")
    I(f"s_add_u32 s14, s10, {WS_SEL}")
    I("s_addc_u32 s15, s11, 0")
    I("s_load_dwordx4 s[40:43], s[14:15], 0")
    srd(16, 4, 5, 2048*896)
    srd(20, 6, 7, 448*896)
    srd(24, 10, 11, WS_SIZE)
    srd(28, 8, 9, 2048*896)
    I("v_and_b32 v1, 63, v0")
    I("v_lshrrev_b32 v2, 6, v0")
    I("v_and_b32 v3, 15, v0")
    I("v_bfe_u32 v4, v0, 4, 2")
    I("s_lshl_b32 s32, s12, 6")
    I("v_lshlrev_b32 v5, 4, v2")
    I("v_add3_u32 v5, v5, v3, s32")
    I("v_mul_u32_u24 v6, 896, v5")
    I("v_lshl_add_u32 v7, v4, 4, v6")
    I(f"v_add_u32 v7, {WS_O}, v7")
    XF = 64
    for s in range(14):
        I(f"buffer_load_dwordx4 v[{XF+4*s}:{XF+4*s+3}], v7, s[24:27], 0 offen offset:{64*s}")
    WT = 128; WA = 184
    I("s_lshl_b32 s33, s13, 7")
    I("v_and_b32 v8, 7, v0")
    I("v_lshrrev_b32 v9, 3, v0")
    for p in range(14):
        I(f"v_add_u32 v10, {32*p}, v9")
        I("v_mul_u32_u24 v11, 896, v10")
        I("v_lshl_add_u32 v11, v8, 4, v11")
        I("v_add_u32 v11, s33, v11")
        I(f"buffer_load_dwordx4 v[{WT+4*p}:{WT+4*p+3}], v11, s[20:23], 0 offen")
        I("v_mul_u32_u24 v11, 160, v10")
        I("v_lshrrev_b32 v10, 3, v10")
        I("v_lshl_add_u32 v11, v10, 7, v11")
        I(f"v_lshl_add_u32 v{WA+p}, v8, 4, v11")
        I(f"v_add_u32 v{WA+p}, 512, v{WA+p}")
    I("v_lshl_add_u32 v12, v4, 3, v6")
    I("v_add_u32 v12, s33, v12")
    for t in range(4):
        I(f"buffer_load_dwordx2 v[{200+2*t}:{201+2*t}], v12, s[16:19], 0 offen offset:{32*t}")
    I("v_lshlrev_b32 v13, 3, v5")
    I(f"v_add_u32 v13, {WS_STATS}, v13")
    I("buffer_load_dwordx2 v[208:209], v13, s[24:27], 0 offen")
    I("s_waitcnt lgkmcnt(0)")
    I("v_readfirstlane_b32 s34, v2")
    I("s_nop 3")
    I("s_cmp_gt_u32 s34, 1")
    I("s_cbranch_scc1 K3_noy")
    I("s_cmp_eq_u32 s34, 0")
    I("s_cselect_b32 s35, s40, s41")
    I("s_cselect_b32 s36, s42, s43")
    I("s_lshr_b32 s37, s35, 6")
    I("s_cmp_lg_u32 s37, s12")
    I("s_cbranch_scc1 K3_noy")
    I("s_mul_i32 s38, s34, 1792")
    I("s_lshl_b32 s39, s13, 8")
    I("s_add_u32 s38, s38, s39")
    I(f"s_add_u32 s38, s38, {WS_YP}")
    I("v_lshlrev_b32 v14, 2, v1")
    I("v_add_u32 v14, s38, v14")
    I("v_mov_b32 v15, 0")
    for b in range(4):
        for k in range(14):
            I(f"buffer_load_dword v{16+k}, v14, s[24:27], 0 offen")
            I("v_add_u32 v14, 3584, v14")
        I("s_waitcnt vmcnt(0)")
        for k in range(14):
            I(f"v_add_f32 v15, v15, v{16+k}")
    rne_bf16_as_f32(15, 15)
    I("v_mul_f32 v15, s36, v15")
    rne_bf16_as_f32(15, 15)
    I("v_lshlrev_b32 v14, 2, v1")
    I("s_lshl_b32 s39, s34, 8")
    I("v_add_u32 v14, s39, v14")
    I(f"ds_write_b32 v14, v15")
    LBL("K3_noy")
    I("s_waitcnt vmcnt(0)")
    for p in range(14):
        I(f"ds_write_b128 v{WA+p}, v[{WT+4*p}:{WT+4*p+3}]")
    I("s_waitcnt lgkmcnt(0)")
    I("s_barrier")
    I("v_mul_u32_u24 v44, 1408, v4")
    I("v_lshrrev_b32 v45, 2, v3")
    I("v_mul_u32_u24 v45, 160, v45")
    I("v_add_u32 v44, v44, v45")
    I("v_and_b32 v45, 3, v3")
    I("v_lshl_add_u32 v44, v45, 3, v44")
    I("v_add_u32 v44, 512, v44")
    I(f"v_add_u32 v45, {7*5632}, v44")
    ACC = 212
    for r in range(ACC, ACC+16):
        I(f"v_mov_b32 v{r}, 0")
    BF = [128, 144]
    def rd(s):
        base = 44 if s < 7 else 45
        so = (s if s < 7 else s-7) * 5632
        for t in range(4):
            d = BF[s & 1] + 4*t
            I(f"ds_read_b64_tr_b16 v[{d}:{d+1}], v{base} offset:{so+32*t}")
            I(f"ds_read_b64_tr_b16 v[{d+2}:{d+3}], v{base} offset:{so+32*t+640}")
    rd(0)
    for s in range(14):
        if s < 13:
            rd(s+1)
            I("s_waitcnt lgkmcnt(8)")
        else:
            I("s_waitcnt lgkmcnt(0)")
        for t in range(4):
            d = BF[s & 1] + 4*t
            I(f"v_mfma_f32_16x16x32_bf16 v[{ACC+4*t}:{ACC+4*t+3}], v[{d}:{d+3}], v[{XF+4*s}:{XF+4*s+3}], v[{ACC+4*t}:{ACC+4*t+3}]")
    I("v_rcp_f32 v46, v209")
    I("v_cmp_eq_u32 s[44:45], s40, v5")
    I("v_cmp_eq_u32 s[46:47], s41, v5")
    I("s_or_b64 s[48:49], s[44:45], s[46:47]")
    I("v_mov_b32 v47, 0")
    I("v_mov_b32 v48, 256")
    I("v_cndmask_b32 v47, v47, v48, s[46:47]")
    I("v_lshl_add_u32 v47, v4, 4, v47")
    I("s_nop 15")
    for t in range(4):
        I(f"ds_read_b128 v[{16+4*t}:{16+4*t+3}], v47 offset:{64*t}")
    I("s_waitcnt lgkmcnt(0)")
    I("v_mov_b32 v49, 0")
    for t in range(4):
        o = []
        for i in range(4):
            a = ACC + 4*t + i
            xr = 200 + 2*t + (i >> 1)
            if i & 1:
                I(f"v_and_b32 v50, 0xffff0000, v{xr}")
            else:
                I(f"v_lshlrev_b32 v50, 16, v{xr}")
            rne_bf16_as_f32(51, a)
            I("v_add_f32 v51, v50, v51")
            rne_bf16_as_f32(51, 51)
            I("v_sub_f32 v52, v50, v208")
            rne_bf16_as_f32(52, 52)
            I("v_mul_f32 v52, v52, v46")
            rne_bf16_as_f32(52, 52)
            I(f"v_cndmask_b32 v53, v49, v{16+4*t+i}, s[48:49]")
            I("v_add_f32 v52, v52, v53")
            rne_bf16_as_f32(52, 52)
            I(f"v_add_f32 v{54+i}, v51, v52")
        I("v_cvt_pk_bf16_f32 v58, v54, v55")
        I("v_cvt_pk_bf16_f32 v59, v56, v57")
        I(f"buffer_store_dwordx2 v[58:59], v12, s[28:31], 0 offen offset:{32*t}")
        I("s_nop 1")
    LBL("K3_done")
    I("s_endpgm")

if __name__ == "__main__":
    gen.GENS = [gen_k1, gen_k2, gen_k3, lambda: descriptor("k1_kernel", 256), lambda: descriptor("k2_kernel", 256), lambda: descriptor("k3_kernel", 256)]
    emit(sys.argv[1], [("k1_kernel", 224, 512, K1_LDS), ("k2_kernel", N_MOE+256, 256, K2_LDS), ("k3_kernel", 224, 256, K3_LDS)])
```

```python
import sys

L = []
import re
def I(s):
    m = re.search(r"offset:(\d+)", s)
    if m:
        lim = 4095 if s.startswith(("buffer_", "global_")) else 65535
        assert int(m.group(1)) <= lim, s
    L.append("    " + s)
def LBL(s): L.append(s + ":")
def C(s): L.append("    ; " + s)

WS_QKV   = 0x000000
WS_O     = 0x600000
WS_STATS = 0x7C0000
WS_R     = 0x7C4000
WS_SEL   = 0x7C6000
WS_YP    = 0x7C8000
WS_SIZE  = 0x800000

def srd(dst, lo, hi, size):
    I(f"s_mov_b32 s{dst}, s{lo}")
    I(f"s_and_b32 s{dst+1}, s{hi}, 0xffff")
    I(f"s_mov_b32 s{dst+2}, {size}")
    I(f"s_mov_b32 s{dst+3}, 0x00020000")

STAMP_WG = None
stamp_count = [0]
def stamp_init():
    if globals()['STAMP_WG'] is None: return
    I("s_load_dwordx2 s[90:91], s[0:1], 72")
    I("s_waitcnt lgkmcnt(0)")
    I("s_mov_b32 s92, s90"); I("s_and_b32 s93, s91, 0xffff"); I("s_mov_b32 s94, 256"); I("s_mov_b32 s95, 0x00020000")
def stamp(idx):
    if STAMP_WG is None: return
    stamp_count[0] += 1
    n = stamp_count[0]
    I("s_memtime s[88:89]")
    I(f"s_cmp_lg_u32 s2, {STAMP_WG}")
    I(f"s_cbranch_scc1 STAMP_skip{n}")
    I("s_waitcnt lgkmcnt(0)")
    I("v_mov_b32 v255, s88")
    I(f"v_lshrrev_b32 v254, 6, v0")
    I(f"v_lshlrev_b32 v254, 6, v254")
    I(f"v_add_u32 v254, {4*idx}, v254")
    I("buffer_store_dword v255, v254, s[92:95], 0 offen")
    LBL(f"STAMP_skip{n}")
    I("s_waitcnt lgkmcnt(0)")

def kernel_header(name):
    L.append(f".globl {name}")
    L.append(".p2align 8")
    L.append(f".type {name},@function")
    LBL(name)

def rne_bf16_as_f32(dst, src, tmp=None):
    I(f"v_cvt_pk_bf16_f32 v{dst}, v{src}, v{src}")
    I(f"v_lshlrev_b32 v{dst}, 16, v{dst}")

K1_LDS_STRIDE = 224
K1_LDS = 448 * 224 + 56 * 128

def gen_k1():
    kernel_header("k1_kernel")
    I("s_cmp_ge_u32 s2, 224")
    I("s_cbranch_scc1 K1_done")
    I("s_load_dwordx4 s[4:7], s[0:1], 0")
    I("s_load_dwordx2 s[8:9], s[0:1], 32")
    I("s_load_dwordx2 s[10:11], s[0:1], 80")
    I("s_and_b32 s12, s2, 7")
    I("s_lshl_b32 s12, s12, 1")
    I("s_lshr_b32 s13, s2, 3")
    I("s_and_b32 s13, s13, 1")
    I("s_add_u32 s12, s12, s13")
    I("s_lshr_b32 s14, s2, 4")
    I("s_waitcnt lgkmcnt(0)")
    stamp_init(); stamp(0)
    srd(16, 4, 5, 2048*896)
    srd(20, 6, 7, 448*2688)
    srd(24, 10, 11, WS_SIZE)
    srd(28, 8, 9, 896)
    I("v_and_b32 v1, 63, v0")
    I("v_lshrrev_b32 v2, 6, v0")
    I("v_and_b32 v3, 15, v0")
    I("v_bfe_u32 v4, v0, 4, 2")
    I("s_lshl_b32 s15, s12, 7")
    I("v_lshlrev_b32 v5, 4, v2")
    I("v_add3_u32 v5, v5, v3, s15")
    I("v_mul_u32_u24 v6, 896, v5")
    I("v_lshl_add_u32 v6, v4, 4, v6")
    XF = 64
    for s in range(14):
        I(f"buffer_load_dwordx4 v[{XF+4*s}:{XF+4*s+3}], v6, s[16:19], 0 offen offset:{64*s}")
    WT = 128
    WA = 176
    I("s_mul_i32 s32, s14, 192")
    I("s_mov_b32 s33, 43691")
    for p in range(11):
        if p == 10:
            I("v_readfirstlane_b32 s34, v2")
            I("s_nop 3")
            I("s_cmp_ge_u32 s34, 4")
            I("s_cbranch_scc1 K1_skip_w10")
        I(f"v_add_u32 v7, {512*p}, v0")
        I("v_mul_u32_u24 v8, s33, v7")
        I("v_lshrrev_b32 v8, 19, v8")
        I("v_mul_u32_u24 v9, 12, v8")
        I("v_sub_u32 v9, v7, v9")
        I("v_mul_u32_u24 v10, 2688, v8")
        I("v_lshl_add_u32 v10, v9, 4, v10")
        I("v_add_u32 v10, s32, v10")
        I(f"buffer_load_dwordx4 v[{WT+4*p}:{WT+4*p+3}], v10, s[20:23], 0 offen")
        I("v_mul_u32_u24 v11, 224, v8")
        I("v_lshrrev_b32 v12, 3, v8")
        I("v_lshl_add_u32 v11, v12, 7, v11")
        I(f"v_lshl_add_u32 v{WA+p}, v9, 4, v11")
        if p == 10:
            LBL("K1_skip_w10")
    I("v_mov_b32 v12, 0x3f803f80")
    I("v_mov_b32 v13, 0x3f803f80")
    I("v_mov_b32 v14, 0x3f803f80")
    I("v_mov_b32 v15, 0x3f803f80")
    for r in range(16, 24):
        I(f"v_mov_b32 v{r}, 0")
    stamp(1)
    I("s_waitcnt vmcnt(11)")
    stamp(2)
    for s in range(14):
        I(f"v_mfma_f32_16x16x32_bf16 v[16:19], v[{XF+4*s}:{XF+4*s+3}], v[{XF+4*s}:{XF+4*s+3}], v[16:19]")
        I(f"v_mfma_f32_16x16x32_bf16 v[20:23], v[{XF+4*s}:{XF+4*s+3}], v[12:15], v[20:23]")
    I("s_nop 15")
    I("v_and_b32 v24, 3, v3")
    I("v_cmp_eq_u32 vcc, 1, v24")
    I("s_nop 1")
    I("v_cndmask_b32 v25, v16, v17, vcc")
    I("v_cndmask_b32 v26, v20, v21, vcc")
    I("v_cmp_eq_u32 vcc, 2, v24")
    I("s_nop 1")
    I("v_cndmask_b32 v25, v25, v18, vcc")
    I("v_cndmask_b32 v26, v26, v22, vcc")
    I("v_cmp_eq_u32 vcc, 3, v24")
    I("s_nop 1")
    I("v_cndmask_b32 v25, v25, v19, vcc")
    I("v_cndmask_b32 v26, v26, v23, vcc")
    I("v_lshrrev_b32 v27, 2, v3")
    I("v_lshl_add_u32 v27, v27, 4, v3")
    I("v_lshlrev_b32 v27, 2, v27")
    I("ds_bpermute_b32 v25, v27, v25")
    I("ds_bpermute_b32 v26, v27, v26")
    I("s_waitcnt lgkmcnt(0)")
    I("v_mov_b32 v28, 0x3b124925")
    I("v_mul_f32 v26, v26, v28")
    I("v_mul_f32 v25, v25, v28")
    I("v_fma_f32 v25, -v26, v26, v25")
    I("v_max_f32 v25, 0, v25")
    rne_bf16_as_f32(26, 26)
    rne_bf16_as_f32(25, 25)
    I("v_add_f32 v25, 0x3727c5ac, v25")
    rne_bf16_as_f32(25, 25)
    I("v_sqrt_f32 v25, v25")
    I("s_nop 0")
    rne_bf16_as_f32(25, 25)
    I("v_rcp_f32 v29, v25")
    I("s_cmp_lg_u32 s14, 0")
    I("s_cbranch_scc1 K1_nostats")
    I("v_cmp_eq_u32 vcc, 0, v4")
    I("s_and_saveexec_b64 s[36:37], vcc")
    I("v_mov_b32 v30, v26")
    I("v_mov_b32 v31, v25")
    I(f"v_lshlrev_b32 v32, 3, v5")
    I(f"buffer_store_dwordx2 v[30:31], v32, s[24:27], 0 offen offset:0 ; placeholder")
    L.pop()
    I(f"v_add_u32 v32, {WS_STATS}, v32")
    I("buffer_store_dwordx2 v[30:31], v32, s[24:27], 0 offen")
    I("s_mov_b64 exec, s[36:37]")
    LBL("K1_nostats")
    I("v_sub_f32 v30, 0, v26")
    I("v_mov_b32 v31, v30")
    I("v_mov_b32 v32, v29")
    I("v_mov_b32 v33, v29")
    for r in range(XF, XF+56):
        t = 34 + 2*(r & 1)
        I(f"v_lshlrev_b32 v{t}, 16, v{r}")
        I(f"v_and_b32 v{t+1}, 0xffff0000, v{r}")
        I(f"v_pk_add_f32 v[{t}:{t+1}], v[{t}:{t+1}], v[30:31]")
        I(f"v_pk_mul_f32 v[{t}:{t+1}], v[{t}:{t+1}], v[32:33]")
        I(f"v_cvt_pk_bf16_f32 v{r}, v{t}, v{t+1}")
    stamp(3)
    I("s_cmp_lg_u32 s14, 0")
    I("s_cbranch_scc1 K1_nor")
    I("v_lshlrev_b32 v38, 4, v4")
    RT = 192
    for s in range(14):
        I(f"buffer_load_dwordx4 v[{RT+4*s}:{RT+4*s+3}], v38, s[28:31], 0 offen offset:{64*s}")
    for r in range(40, 44):
        I(f"v_mov_b32 v{r}, 0")
    I("s_waitcnt vmcnt(0)")
    for s in range(14):
        I(f"v_mfma_f32_16x16x32_bf16 v[40:43], v[{XF+4*s}:{XF+4*s+3}], v[{RT+4*s}:{RT+4*s+3}], v[40:43]")
    I("s_nop 15")
    for r in range(40, 44):
        rne_bf16_as_f32(r, r)
    I("v_cmp_eq_u32 vcc, 0, v3")
    I("s_and_saveexec_b64 s[36:37], vcc")
    I("v_lshlrev_b32 v38, 4, v2")
    I("v_lshl_add_u32 v38, v4, 2, v38")
    I("v_add_u32 v38, s15, v38")
    I("v_lshlrev_b32 v38, 2, v38")
    I(f"v_add_u32 v38, {WS_R}, v38")
    I("buffer_store_dwordx4 v[40:43], v38, s[24:27], 0 offen")
    I("s_mov_b64 exec, s[36:37]")
    LBL("K1_nor")
    I("s_waitcnt vmcnt(0)")
    stamp(4)
    for p in range(10):
        I(f"ds_write_b128 v{WA+p}, v[{WT+4*p}:{WT+4*p+3}]")
    I("s_cmp_ge_u32 s34, 4")
    I("s_cbranch_scc1 K1_skip_w10b")
    I(f"ds_write_b128 v{WA+10}, v[{WT+40}:{WT+43}]")
    LBL("K1_skip_w10b")
    I("s_waitcnt lgkmcnt(0)")
    I("s_barrier")
    stamp(5)
    I("v_mul_u32_u24 v44, 1920, v4")
    I("v_lshrrev_b32 v45, 2, v3")
    I("v_mul_u32_u24 v45, 224, v45")
    I("v_add_u32 v44, v44, v45")
    I("v_and_b32 v45, 3, v3")
    I("v_lshl_add_u32 v44, v45, 3, v44")
    I(f"v_add_u32 v45, {7*7680}, v44")
    ACC = 200
    for r in range(ACC, ACC+24):
        I(f"v_mov_b32 v{r}, 0")
    BF = [128, 152]
    def rd(s):
        base = 44 if s < 7 else 45
        so = (s if s < 7 else s-7) * 7680
        for t in range(6):
            d = BF[s & 1] + 4*t
            I(f"ds_read_b64_tr_b16 v[{d}:{d+1}], v{base} offset:{so+32*t}")
            I(f"ds_read_b64_tr_b16 v[{d+2}:{d+3}], v{base} offset:{so+32*t+896}")
    rd(0)
    for s in range(14):
        if s < 13:
            rd(s+1)
            I("s_waitcnt lgkmcnt(12)")
        else:
            I("s_waitcnt lgkmcnt(0)")
        for t in range(6):
            d = BF[s & 1] + 4*t
            I(f"v_mfma_f32_16x16x32_bf16 v[{ACC+4*t}:{ACC+4*t+3}], v[{d}:{d+3}], v[{XF+4*s}:{XF+4*s+3}], v[{ACC+4*t}:{ACC+4*t+3}]")
    I("s_nop 15")
    stamp(6)
    I("s_mul_i32 s35, s14, 24")
    I("v_add_u32 v46, s35, v4")
    I("s_movk_i32 s38, 9363")
    for t in range(6):
        I(f"v_add_u32 v47, {4*t}, v46")
        I("v_mul_u32_u24 v48, s38, v47")
        I("v_lshrrev_b32 v48, 16, v48")
        I("v_mul_u32_u24 v49, 7, v48")
        I("v_sub_u32 v49, v47, v49")
        I("v_lshl_add_u32 v48, v48, 11, v5")
        I("v_lshlrev_b32 v48, 6, v48")
        I("v_lshl_add_u32 v48, v49, 3, v48")
        I(f"v_cvt_pk_bf16_f32 v50, v{ACC+4*t}, v{ACC+4*t+1}")
        I(f"v_cvt_pk_bf16_f32 v51, v{ACC+4*t+2}, v{ACC+4*t+3}")
        I("buffer_store_dwordx2 v[50:51], v48, s[24:27], 0 offen")
        I("s_nop 1")
    stamp(7)
    LBL("K1_done")
    I("s_endpgm")

def descriptor(name, vgpr, sgpr=100):
    L.append(".section .rodata,\"a\"")
    L.append(".p2align 6")
    L.append(f".amdhsa_kernel {name}")
    L.append(f"  .amdhsa_next_free_vgpr {vgpr}")
    L.append(f"  .amdhsa_next_free_sgpr {sgpr}")
    L.append(f"  .amdhsa_accum_offset {((vgpr+3)//4)*4}")
    L.append("  .amdhsa_group_segment_fixed_size 0")
    L.append("  .amdhsa_kernarg_size 88")
    L.append("  .amdhsa_user_sgpr_count 2")
    L.append("  .amdhsa_user_sgpr_kernarg_segment_ptr 1")
    L.append("  .amdhsa_system_sgpr_workgroup_id_x 1")
    L.append(".end_amdhsa_kernel")

HEADER = """; Kernarg layout for this problem (88 bytes, ptrs only, base s[0:1]):
"""

def emit(path, kernels):
    del L[:]
    out = [HEADER.rstrip()]
    for (name, grid, block, lds) in kernels:
        out.append(f"; @launch kernel={name} grid=({grid},1,1) block=({block},1,1) lds={lds}")
    out.append('.amdgcn_target "amdgcn-amd-amdhsa--gfx950"')
    out.append(".text")
    for g in GENS:
        g()
    out += L
    open(path, "w").write("\n".join(out) + "\n")

if __name__ == "__main__":
    if len(sys.argv) > 2: STAMP_WG = int(sys.argv[2])
    GENS = [gen_k1, lambda: descriptor("k1_kernel", 256)]
    emit(sys.argv[1] if len(sys.argv) > 1 else "k.s", [("k1_kernel", 224, 512, K1_LDS)])
```

```python
from gen import *
import gen

K2_LDS = 49152
N_MOE = 56

def gen_k2():
    kernel_header("k2_kernel")
    I(f"s_cmp_ge_u32 s2, {N_MOE+256}")
    I("s_cbranch_scc1 K2_done")
    I("s_load_dwordx2 s[4:5], s[0:1], 0")
    I("s_load_dwordx4 s[8:11], s[0:1], 40")
    I("s_load_dwordx2 s[12:13], s[0:1], 56")
    I("s_load_dwordx2 s[14:15], s[0:1], 80")
    I("s_waitcnt lgkmcnt(0)")
    srd(24, 14, 15, WS_SIZE)
    stamp_init(); stamp(0)
    I(f"s_cmp_lt_u32 s2, {N_MOE}")
    I("s_cbranch_scc1 K2_moe")
    I(f"s_sub_u32 s16, s2, {N_MOE}")
    I("s_lshr_b32 s17, s16, 4")
    I("s_and_b32 s18, s16, 15")
    I("v_and_b32 v1, 63, v0")
    I("v_lshrrev_b32 v2, 6, v0")
    I("v_and_b32 v3, 31, v0")
    I("v_bfe_u32 v4, v0, 5, 1")
    I("v_and_b32 v5, 3, v0")
    I("v_lshrrev_b32 v6, 2, v0")
    I("s_lshl_b32 s19, s18, 7")
    I("s_sub_u32 s20, s19, 256")
    I("s_add_u32 s21, s17, 16")
    I("s_lshl_b32 s21, s21, 17")
    I("v_cmp_eq_u32 s[40:41], 3, v5")
    for p in range(6):
        I(f"v_add_u32 v7, {64*p}, v6")
        I("v_add_u32 v7, s20, v7")
        I("v_max_i32 v7, 0, v7")
        I("v_lshlrev_b32 v7, 6, v7")
        I("v_lshl_add_u32 v7, v5, 4, v7")
        I("v_add_u32 v7, s21, v7")
        I(f"buffer_load_dwordx4 v[{64+8*p}:{64+8*p+3}], v7, s[24:27], 0 offen")
        I(f"v_add_u32 v7, 0x200000, v7")
        I(f"buffer_load_dwordx4 v[{64+8*p+4}:{64+8*p+7}], v7, s[24:27], 0 offen")
    I("v_lshl_add_u32 v8, v2, 5, v3")
    I("v_add_u32 v8, s19, v8")
    I("s_lshl_b32 s22, s17, 11")
    I("v_add_u32 v9, s22, v8")
    I("v_lshlrev_b32 v9, 6, v9")
    I("v_lshl_add_u32 v9, v4, 4, v9")
    I("buffer_load_dwordx4 v[16:19], v9, s[24:27], 0 offen")
    I("buffer_load_dwordx4 v[20:23], v9, s[24:27], 0 offen offset:32")
    I("v_lshrrev_b32 v10, 2, v6")
    I("v_and_b32 v10, 3, v10")
    I("v_xor_b32 v10, v10, v5")
    I("v_lshlrev_b32 v10, 4, v10")
    I("v_lshl_add_u32 v10, v6, 6, v10")
    I("v_lshlrev_b32 v11, 4, v5")
    I("v_lshl_add_u32 v11, v6, 6, v11")
    I("v_add_u32 v11, 24576, v11")
    I("v_mov_b32 v12, 0")
    I("v_mov_b32 v13, 0x3f80")
    stamp(1)
    I("s_waitcnt vmcnt(0)")
    stamp(2)
    for p in range(6):
        a = 64+8*p
        I(f"v_cndmask_b32 v{a+2}, v{a+2}, v12, s[40:41]")
        I(f"v_cndmask_b32 v{a+3}, v{a+3}, v12, s[40:41]")
        I(f"v_cndmask_b32 v{a+6}, v{a+6}, v13, s[40:41]")
        I(f"v_cndmask_b32 v{a+7}, v{a+7}, v12, s[40:41]")
        I(f"ds_write_b128 v10, v[{a}:{a+3}] offset:{4096*p}")
        I(f"ds_write_b128 v11, v[{a+4}:{a+7}] offset:{4096*p}")
    I("v_cmp_eq_u32 vcc, 1, v4")
    I("s_nop 1")
    I("v_cndmask_b32 v22, v22, v12, vcc")
    I("v_cndmask_b32 v23, v23, v12, vcc")
    I("s_waitcnt lgkmcnt(0)")
    I("s_barrier")
    stamp(3)
    I("v_lshrrev_b32 v14, 2, v3")
    I("v_and_b32 v14, 3, v14")
    I("v_xor_b32 v15, v14, v4")
    I("v_lshlrev_b32 v15, 4, v15")
    I("v_lshl_add_u32 v15, v8, 6, v15")
    L.pop()
    I("v_lshl_add_u32 v56, v2, 5, v3")
    I("v_lshl_add_u32 v15, v56, 6, v15")
    I("v_add_u32 v57, 2, v4")
    I("v_xor_b32 v57, v57, v14")
    I("v_lshlrev_b32 v57, 4, v57")
    I("v_lshl_add_u32 v57, v56, 6, v57")
    I("v_readfirstlane_b32 s23, v2")
    I("s_lshl_b32 s28, s18, 2")
    I("s_nop 3")
    I("s_add_u32 s28, s28, s23")
    I("s_sub_i32 s28, 8, s28")
    I("s_max_i32 s28, s28, 0")
    I("v_mov_b32 v58, 0xf149f2ca")
    S = 64
    def kread(j):
        b = 24 + 8*(j & 1)
        I(f"ds_read_b128 v[{b}:{b+3}], v15 offset:{2048*j}")
        I(f"ds_read_b128 v[{b+4}:{b+7}], v57 offset:{2048*j}")
    kread(0)
    for j in range(9):
        if j < 8:
            kread(j+1)
            I("s_waitcnt lgkmcnt(2)")
        else:
            I("s_waitcnt lgkmcnt(0)")
        b = 24 + 8*(j & 1)
        sj = S + 16*j
        if j < 8:
            I(f"s_cmp_gt_u32 s28, {j}")
            I(f"s_cbranch_scc1 K2_inv{j}")
        I(f"v_mfma_f32_32x32x16_bf16 v[{sj}:{sj+15}], v[{b}:{b+3}], v[16:19], 0")
        I(f"v_mfma_f32_32x32x16_bf16 v[{sj}:{sj+15}], v[{b+4}:{b+7}], v[20:23], v[{sj}:{sj+15}]")
        if j < 8:
            I(f"s_branch K2_ok{j}")
            LBL(f"K2_inv{j}")
            for i in range(16):
                I(f"v_mov_b32 v{sj+i}, v58")
            LBL(f"K2_ok{j}")
    I("s_nop 15")
    I("s_nop 7")
    stamp(4)
    I("v_lshlrev_b32 v59, 2, v4")
    I("v_sub_u32 v59, v3, v59")
    for i in range(16):
        c = 8*(i >> 2) + (i & 3)
        I(f"v_cmp_gt_i32 vcc, {c}, v59")
        I("s_nop 1")
        I(f"v_cndmask_b32 v{S+i}, v58, v{S+i}, vcc")
        I(f"v_cndmask_b32 v{S+128+i}, v{S+128+i}, v58, vcc")
    I(f"v_max_f32 v60, v{S}, v{S+1}")
    for i in range(2, 144, 2):
        I(f"v_max3_f32 v60, v60, v{S+i}, v{S+i+1}")
    I("v_mov_b32 v61, v60")
    I("s_nop 1")
    I("v_permlane32_swap_b32 v60, v61")
    I("v_max_f32 v60, v60, v61")
    I("v_mov_b32 v62, 0x3e8b9c17 ; placeholder")
    L.pop()
    import struct, math
    cc = (28 ** -0.5) * math.log2(math.e)
    cbits = struct.unpack("<I", struct.pack("<f", cc))[0]
    I(f"s_mov_b32 s29, 0x{cbits:08x}")
    I("v_mul_f32 v60, s29, v60")
    I("v_sub_f32 v60, 0, v60")
    for i in range(144):
        I(f"v_fma_f32 v{S+i}, v{S+i}, s29, v60")
        I(f"v_exp_f32 v{S+i}, v{S+i}")
    I("s_nop 0")
    for j in range(9):
        for n in range(8):
            I(f"v_cvt_pk_bf16_f32 v{S+16*j+n}, v{S+16*j+2*n}, v{S+16*j+2*n+1}")
    stamp(5)
    for r in range(208, 224):
        I(f"v_mov_b32 v{r}, 0")
    I("v_bfe_u32 v56, v0, 4, 1")
    I("v_and_b32 v57, 15, v0")
    I("v_lshrrev_b32 v59, 2, v57")
    I("v_lshl_add_u32 v59, v4, 2, v59")
    I("v_lshl_add_u32 v59, v2, 5, v59")
    I("v_lshlrev_b32 v59, 6, v59")
    I("v_lshl_add_u32 v59, v56, 5, v59")
    I("v_and_b32 v57, 3, v57")
    I("v_lshl_add_u32 v59, v57, 3, v59")
    I("v_add_u32 v59, 24576, v59")
    def vread(j):
        b = 24 + 8*(j & 1)
        for m in range(2):
            I(f"ds_read_b64_tr_b16 v[{b+4*m}:{b+4*m+1}], v59 offset:{2048*j+1024*m}")
            I(f"ds_read_b64_tr_b16 v[{b+4*m+2}:{b+4*m+3}], v59 offset:{2048*j+1024*m+512}")
    vread(0)
    for j in range(9):
        if j < 8:
            vread(j+1)
            I("s_waitcnt lgkmcnt(4)")
        else:
            I("s_waitcnt lgkmcnt(0)")
        b = 24 + 8*(j & 1)
        for m in range(2):
            I(f"v_mfma_f32_32x32x16_bf16 v[208:223], v[{b+4*m}:{b+4*m+3}], v[{S+16*j+4*m}:{S+16*j+4*m+3}], v[208:223]")
    I("s_nop 15")
    I("s_nop 7")
    stamp(6)
    I("v_mov_b32 v60, v220")
    I("v_mov_b32 v61, v220")
    I("s_nop 1")
    I("v_permlane32_swap_b32 v60, v61")
    I("v_rcp_f32 v61, v61")
    I("v_mul_u32_u24 v9, 896, v8")
    I("s_mul_i32 s30, s17, 56")
    I("v_add_u32 v9, s30, v9")
    I("v_lshl_add_u32 v9, v4, 3, v9")
    I(f"v_add_u32 v9, {WS_O}, v9")
    I("s_nop 0")
    for a in range(4):
        for b in range(4):
            I(f"v_mul_f32 v{208+4*a+b}, v{208+4*a+b}, v61")
        I(f"v_cvt_pk_bf16_f32 v{24+2*a}, v{208+4*a}, v{208+4*a+1}")
        I(f"v_cvt_pk_bf16_f32 v{24+2*a+1}, v{208+4*a+2}, v{208+4*a+3}")
    for a in range(3):
        I(f"buffer_store_dwordx2 v[{24+2*a}:{24+2*a+1}], v9, s[24:27], 0 offen offset:{16*a}")
    stamp(7)
    I("v_cmp_eq_u32 vcc, 0, v4")
    I("s_and_saveexec_b64 s[36:37], vcc")
    I("buffer_store_dwordx2 v[30:31], v9, s[24:27], 0 offen offset:48")
    I("s_branch K2_done")
    LBL("K2_moe")
    srd(16, 4, 5, 2048*896)
    srd(20, 8, 9, 448*3584)
    srd(28, 10, 11, 448*3584)
    srd(32, 12, 13, 1792*896)
    I("v_and_b32 v1, 63, v0")
    I("v_and_b32 v2, 3, v0")
    I("v_lshrrev_b32 v3, 2, v0")
    I("v_lshlrev_b32 v4, 4, v1")
    I(f"v_add_u32 v4, {WS_R}, v4")
    I("v_add_u32 v5, 4096, v4")
    for p in range(8):
        I(f"buffer_load_dwordx4 v[{160+4*p}:{160+4*p+3}], v{4 if p < 4 else 5}, s[24:27], 0 offen offset:{1024*(p&3)}")
    I("s_lshl_b32 s36, s2, 6")
    I("v_mul_u32_u24 v5, 3584, v3")
    I("v_lshl_add_u32 v5, v2, 4, v5")
    I("v_add_u32 v5, s36, v5")
    I(f"s_mov_b32 s37, {64*3584}")
    G = 64; U = 96
    I("s_mov_b32 s38, 0")
    for p in range(7):
        I(f"buffer_load_dwordx4 v[{G+4*p}:{G+4*p+3}], v5, s[20:23], s38 offen")
        I(f"buffer_load_dwordx4 v[{U+4*p}:{U+4*p+3}], v5, s[28:31], s38 offen")
        if p < 6:
            I("s_add_u32 s38, s38, s37")
    I("v_mul_u32_u24 v6, 1171, v0")
    I("v_lshrrev_b32 v6, 16, v6")
    I("v_mul_u32_u24 v7, 56, v6")
    I("v_sub_u32 v7, v0, v7")
    I("s_lshl_b32 s39, s2, 5")
    I("v_lshl_add_u32 v8, v6, 3, s39")
    I("v_mul_u32_u24 v8, 896, v8")
    I("v_lshl_add_u32 v8, v7, 4, v8")
    I("v_cmp_gt_u32 vcc, 224, v0")
    I("v_mov_b32 v9, 0x7ffffff0")
    I("s_nop 0")
    I("v_cndmask_b32 v8, v9, v8, vcc")
    D = 128
    I("v_add_u32 v9, 3584, v8")
    for i in range(8):
        I(f"buffer_load_dwordx4 v[{D+4*i}:{D+4*i+3}], v{8 if i < 4 else 9}, s[32:35], 0 offen offset:{896*(i&3)}")
    stamp(1)
    I("s_waitcnt vmcnt(22)")
    stamp(2)
    I("v_lshlrev_b32 v10, 2, v1")
    I("v_sub_u32 v10, 2047, v10")
    I("s_mov_b32 s40, 0xffff0000")
    for p in range(8):
        for e in range(4):
            r = 160 + 4*p + e
            I(f"v_ashrrev_i32 v11, 31, v{r}")
            I(f"v_or_b32 v11, 0x80000000, v11")
            I(f"v_xor_b32 v{r}, v{r}, v11")
            I(f"v_subrev_u32 v11, {256*p+e}, v10")
            I(f"v_and_or_b32 v{r}, v{r}, s40, v11")
    def wave_max(dst):
        for off in (0x041F, 0x081F, 0x101F, 0x201F, 0x401F):
            I(f"ds_swizzle_b32 v12, v{dst} offset:0x{off:04x}")
            I("s_waitcnt lgkmcnt(0)")
            I(f"v_max_u32 v{dst}, v{dst}, v12")
        I(f"v_mov_b32 v12, v{dst}")
        I("s_nop 1")
        I(f"v_permlane32_swap_b32 v{dst}, v12")
        I(f"v_max_u32 v{dst}, v{dst}, v12")
    I("v_max_u32 v13, v160, v161")
    for r in range(162, 192):
        I(f"v_max_u32 v13, v13, v{r}")
    wave_max(13)
    I("v_mov_b32 v14, 0")
    for r in range(160, 192):
        I(f"v_cmp_ne_u32 vcc, v13, v{r}")
        I("s_nop 1")
        I(f"v_cndmask_b32 v15, 0, v{r}, vcc")
        I("v_max_u32 v14, v14, v15")
    wave_max(14)
    I("s_nop 0")
    I("v_readfirstlane_b32 s41, v13")
    I("v_readfirstlane_b32 s42, v14")
    I("s_nop 3")
    for (s, d_idx, d_val) in ((41, 43, 45), (42, 44, 46)):
        I(f"s_and_b32 s{d_idx}, s{s}, 0xffff")
        I(f"s_sub_u32 s{d_idx}, 2047, s{d_idx}")
        I(f"s_and_b32 s{d_val}, s{s}, 0xffff0000")
        I(f"s_cmp_ge_u32 s{d_val}, 0x80000000")
        I(f"s_cselect_b32 s47, 0x80000000, 0xffffffff")
        I(f"s_xor_b32 s{d_val}, s{d_val}, s47")
        I(f"s_and_b32 s{d_val}, s{d_val}, 0xffff0000")
    stamp(3)
    XS = 32768
    I("v_cmp_gt_u32 vcc, 224, v0")
    I("s_and_saveexec_b64 s[48:49], vcc")
    for tok, sidx in ((0, 43), (1, 44)):
        I(f"s_mul_i32 s50, s{sidx}, 896")
        I(f"v_lshlrev_b32 v11, 2, v0")
        I(f"buffer_load_dword v{16+tok}, v11, s[16:19], s50 offen")
        I(f"s_lshl_b32 s51, s{sidx}, 3")
        I(f"s_add_u32 s51, s51, {WS_STATS}")
        I(f"v_mov_b32 v12, s51")
        I(f"buffer_load_dwordx2 v[{18+2*tok}:{19+2*tok}], v12, s[24:27], 0 offen")
    I("s_waitcnt vmcnt(0)")
    for tok in range(2):
        m, s = 18+2*tok, 19+2*tok
        I(f"v_rcp_f32 v22, v{s}")
        I(f"v_lshlrev_b32 v23, 16, v{16+tok}")
        I(f"v_and_b32 v24, 0xffff0000, v{16+tok}")
        I(f"v_sub_f32 v23, v23, v{m}")
        I(f"v_sub_f32 v24, v24, v{m}")
        I(f"v_cvt_pk_bf16_f32 v25, v23, v24")
        I(f"v_lshlrev_b32 v23, 16, v25")
        I(f"v_and_b32 v24, 0xffff0000, v25")
        I(f"v_mul_f32 v23, v23, v22")
        I(f"v_mul_f32 v24, v24, v22")
        I(f"v_cvt_pk_bf16_f32 v25, v23, v24")
        I(f"v_lshlrev_b32 v26, 16, v25")
        I(f"v_and_b32 v27, 0xffff0000, v25")
        I(f"v_lshlrev_b32 v28, 3, v0")
        I(f"ds_write_b64 v28, v[26:27] offset:{XS+1792*tok}")
    I("s_mov_b64 exec, s[48:49]")
    I("s_waitcnt lgkmcnt(0)")
    I("s_barrier")
    stamp(4)
    for r in range(192, 224):
        I(f"v_mov_b32 v{r}, 0")
    I("v_lshlrev_b32 v11, 2, v3")
    for p in range(7):
        I(f"ds_read_b32 v12, v11 offset:{XS+256*p}")
        I(f"ds_read_b32 v13, v11 offset:{XS+1792+256*p}")
        I("s_waitcnt lgkmcnt(0)")
        for mat, base in ((0, G), (1, U)):
            for q in range(4):
                r = base + 4*p + q
                I(f"v_lshlrev_b32 v14, 16, v{r}")
                I(f"v_and_b32 v15, 0xffff0000, v{r}")
                a0 = 192 + 16*mat + 2*q
                a1 = a0 + 8
                I(f"v_fmac_f32 v{a0}, v12, v14")
                I(f"v_fmac_f32 v{a0+1}, v12, v15")
                I(f"v_fmac_f32 v{a1}, v13, v14")
                I(f"v_fmac_f32 v{a1+1}, v13, v15")
    stamp(5)
    I("v_lshlrev_b32 v11, 7, v0")
    for q in range(8):
        I(f"ds_write_b128 v11, v[{192+4*q}:{192+4*q+3}] offset:{16*q}")
    I("s_waitcnt lgkmcnt(0)")
    I("s_barrier")
    I("v_cmp_gt_u32 vcc, 128, v0")
    I("s_and_saveexec_b64 s[48:49], vcc")
    I("s_cbranch_execz K2_moe_r1")
    I("v_lshlrev_b32 v11, 2, v0")
    I("v_mov_b32 v12, 0")
    for b in range(4):
        for k in range(16):
            I(f"ds_read_b32 v{192+k}, v11 offset:{512*(16*b+k)}")
        I("s_waitcnt lgkmcnt(0)")
        for k in range(16):
            I(f"v_add_f32 v12, v12, v{192+k}")
    rne_bf16_as_f32(12, 12)
    I("v_lshrrev_b32 v13, 5, v0")
    I("v_and_b32 v14, 7, v0")
    I("v_lshl_add_u32 v13, v13, 3, v14")
    I("v_bfe_u32 v14, v0, 3, 2")
    I("v_lshl_add_u32 v13, v14, 5, v13")
    I("v_lshlrev_b32 v13, 2, v13")
    I("ds_write_b32 v13, v12 offset:36864")
    LBL("K2_moe_r1")
    I("s_mov_b64 exec, s[48:49]")
    I("s_waitcnt lgkmcnt(0)")
    I("s_barrier")
    I("v_cmp_gt_u32 vcc, 64, v0")
    I("s_and_saveexec_b64 s[48:49], vcc")
    I("s_cbranch_execz K2_moe_r2")
    I("v_lshlrev_b32 v13, 2, v0")
    I("ds_read_b32 v12, v13 offset:36864")
    I("ds_read_b32 v14, v13 offset:37120")
    I("s_waitcnt lgkmcnt(0)")
    I("v_mul_f32 v15, 0xbfb8aa3b, v12")
    I("v_exp_f32 v15, v15")
    I("s_nop 0")
    I("v_add_f32 v15, 1.0, v15")
    I("v_rcp_f32 v15, v15")
    I("s_nop 0")
    I("v_mul_f32 v12, v12, v15")
    rne_bf16_as_f32(12, 12)
    I("v_mul_f32 v12, v12, v14")
    rne_bf16_as_f32(12, 12)
    I("ds_write_b32 v13, v12 offset:37376")
    LBL("K2_moe_r2")
    I("s_mov_b64 exec, s[48:49]")
    I("s_waitcnt lgkmcnt(0)")
    I("s_barrier")
    stamp(6)
    for r in range(192, 208):
        I(f"v_mov_b32 v{r}, 0")
    I("v_lshlrev_b32 v11, 5, v6")
    for i in range(8):
        I(f"ds_read_b32 v12, v11 offset:{37376+4*i}")
        I(f"ds_read_b32 v13, v11 offset:{37376+128+4*i}")
        I("s_waitcnt lgkmcnt(0)")
        for q in range(4):
            r = D + 4*i + q
            I(f"v_lshlrev_b32 v14, 16, v{r}")
            I(f"v_and_b32 v15, 0xffff0000, v{r}")
            I(f"v_fmac_f32 v{192+2*q}, v12, v14")
            I(f"v_fmac_f32 v{192+2*q+1}, v12, v15")
            I(f"v_fmac_f32 v{200+2*q}, v13, v14")
            I(f"v_fmac_f32 v{200+2*q+1}, v13, v15")
    I("s_and_saveexec_b64 s[48:49], -1")
    I("v_cmp_gt_u32 vcc, 224, v0")
    I("s_and_b64 exec, exec, vcc")
    I("v_mul_u32_u24 v11, 3584, v6")
    I("v_lshl_add_u32 v11, v7, 5, v11")
    I("ds_write_b128 v11, v[192:195]")
    I("ds_write_b128 v11, v[196:199] offset:16")
    I("ds_write_b128 v11, v[200:203] offset:1792")
    I("ds_write_b128 v11, v[204:207] offset:1808")
    I("s_waitcnt lgkmcnt(0)")
    I("s_mov_b64 exec, s[48:49]")
    I("s_barrier")
    I("v_cmp_gt_u32 vcc, 224, v0")
    I("s_and_saveexec_b64 s[48:49], vcc")
    I("v_lshlrev_b32 v11, 4, v0")
    for fg in range(4):
        I(f"ds_read_b128 v[{192+4*fg}:{192+4*fg+3}], v11 offset:{3584*fg}")
    I("s_waitcnt lgkmcnt(0)")
    for e in range(4):
        I(f"v_add_f32 v{192+e}, v{192+e}, v{196+e}")
        I(f"v_add_f32 v{200+e}, v{200+e}, v{204+e}")
        I(f"v_add_f32 v{192+e}, v{192+e}, v{200+e}")
    I("s_mul_i32 s50, s2, 3584")
    I(f"s_add_u32 s50, s50, {WS_YP}")
    I("v_add_u32 v11, s50, v11")
    I("buffer_store_dwordx4 v[192:195], v11, s[24:27], 0 offen")
    I("s_mov_b64 exec, s[48:49]")
    stamp(7)
    I("s_cmp_lg_u32 s2, 0")
    I("s_cbranch_scc1 K2_done")
    I("v_cmp_eq_u32 vcc, 0, v0")
    I("s_and_saveexec_b64 s[48:49], vcc")
    I("v_mov_b32 v12, s43")
    I("v_mov_b32 v13, s44")
    for k, sv in ((14, 45), (15, 46)):
        I(f"v_mov_b32 v{k}, s{sv}")
        I(f"v_mul_f32 v{k}, 0xbfb8aa3b, v{k}")
        I(f"v_exp_f32 v{k}, v{k}")
        I("s_nop 0")
        I(f"v_add_f32 v{k}, 1.0, v{k}")
        I(f"v_rcp_f32 v{k}, v{k}")
        I("s_nop 0")
        rne_bf16_as_f32(k, k)
    I(f"v_mov_b32 v11, {WS_SEL}")
    I("buffer_store_dwordx4 v[12:15], v11, s[24:27], 0 offen")
    LBL("K2_done")
    I("s_endpgm")

if __name__ == "__main__":
    if len(sys.argv) > 2: gen.STAMP_WG = int(sys.argv[2])
    gen.GENS = [gen_k1, gen_k2, lambda: descriptor("k1_kernel", 256), lambda: descriptor("k2_kernel", 256)]
    emit(sys.argv[1], [("k1_kernel", 224, 512, K1_LDS), ("k2_kernel", N_MOE+256, 256, K2_LDS)])
```

```python
from gen import *
from gen2 import *
import gen

K3_STRIDE = 160
K3_WO = 448*160 + 56*128
K3_LDS = K3_WO + 512

def gen_k3():
    kernel_header("k3_kernel")
    I("s_cmp_ge_u32 s2, 224")
    I("s_cbranch_scc1 K3_done")
    I("s_load_dwordx2 s[4:5], s[0:1], 0")
    I("s_load_dwordx2 s[6:7], s[0:1], 16")
    I("s_load_dwordx2 s[8:9], s[0:1], 64")
    I("s_load_dwordx2 s[10:11], s[0:1], 80")
    I("s_and_b32 s12, s2, 31")
    I("s_lshr_b32 s13, s2, 5")
    I("s_waitcnt lgkmcnt(0)")
    I(f"s_add_u32 s14, s10, {WS_SEL}")
    I("s_addc_u32 s15, s11, 0")
    I("s_load_dwordx4 s[40:43], s[14:15], 0")
    stamp_init(); stamp(0)
    srd(16, 4, 5, 2048*896)
    srd(20, 6, 7, 448*896)
    srd(24, 10, 11, WS_SIZE)
    srd(28, 8, 9, 2048*896)
    I("v_and_b32 v1, 63, v0")
    I("v_lshrrev_b32 v2, 6, v0")
    I("v_and_b32 v3, 15, v0")
    I("v_bfe_u32 v4, v0, 4, 2")
    I("s_lshl_b32 s32, s12, 6")
    I("v_lshlrev_b32 v5, 4, v2")
    I("v_add3_u32 v5, v5, v3, s32")
    I("v_mul_u32_u24 v6, 896, v5")
    I("v_lshl_add_u32 v7, v4, 4, v6")
    I(f"v_add_u32 v7, {WS_O}, v7")
    XF = 64
    for s in range(14):
        I(f"buffer_load_dwordx4 v[{XF+4*s}:{XF+4*s+3}], v7, s[24:27], 0 offen offset:{64*s}")
    WT = 128; WA = 184
    I("s_lshl_b32 s33, s13, 7")
    I("v_and_b32 v8, 7, v0")
    I("v_lshrrev_b32 v9, 3, v0")
    for p in range(14):
        I(f"v_add_u32 v10, {32*p}, v9")
        I("v_mul_u32_u24 v11, 896, v10")
        I("v_lshl_add_u32 v11, v8, 4, v11")
        I("v_add_u32 v11, s33, v11")
        I(f"buffer_load_dwordx4 v[{WT+4*p}:{WT+4*p+3}], v11, s[20:23], 0 offen")
        I("v_mul_u32_u24 v11, 160, v10")
        I("v_lshrrev_b32 v10, 3, v10")
        I("v_lshl_add_u32 v11, v10, 7, v11")
        I(f"v_lshl_add_u32 v{WA+p}, v8, 4, v11")
        I(f"v_add_u32 v{WA+p}, 512, v{WA+p}")
    I("v_lshl_add_u32 v12, v4, 3, v6")
    I("v_add_u32 v12, s33, v12")
    for t in range(4):
        I(f"buffer_load_dwordx2 v[{200+2*t}:{201+2*t}], v12, s[16:19], 0 offen offset:{32*t}")
    I("v_lshlrev_b32 v13, 3, v5")
    I(f"v_add_u32 v13, {WS_STATS}, v13")
    I("buffer_load_dwordx2 v[208:209], v13, s[24:27], 0 offen")
    I("s_waitcnt lgkmcnt(0)")
    I("v_readfirstlane_b32 s34, v2")
    I("s_nop 3")
    I("s_cmp_gt_u32 s34, 1")
    I("s_cbranch_scc1 K3_noy")
    I("s_cmp_eq_u32 s34, 0")
    I("s_cselect_b32 s35, s40, s41")
    I("s_cselect_b32 s36, s42, s43")
    I("s_lshr_b32 s37, s35, 6")
    I("s_cmp_lg_u32 s37, s12")
    I("s_cbranch_scc1 K3_noy")
    I("s_mul_i32 s38, s34, 1792")
    I("s_lshl_b32 s39, s13, 8")
    I("s_add_u32 s38, s38, s39")
    I(f"s_add_u32 s38, s38, {WS_YP}")
    I("v_lshlrev_b32 v14, 2, v1")
    I("v_add_u32 v14, s38, v14")
    I("v_mov_b32 v15, 0")
    for b in range(4):
        for k in range(14):
            I(f"buffer_load_dword v{16+k}, v14, s[24:27], 0 offen")
            I("v_add_u32 v14, 3584, v14")
        I("s_waitcnt vmcnt(0)")
        for k in range(14):
            I(f"v_add_f32 v15, v15, v{16+k}")
    rne_bf16_as_f32(15, 15)
    I("v_mul_f32 v15, s36, v15")
    rne_bf16_as_f32(15, 15)
    I("v_lshlrev_b32 v14, 2, v1")
    I("s_lshl_b32 s39, s34, 8")
    I("v_add_u32 v14, s39, v14")
    I(f"ds_write_b32 v14, v15")
    LBL("K3_noy")
    stamp(1)
    I("s_waitcnt vmcnt(0)")
    stamp(2)
    for p in range(14):
        I(f"ds_write_b128 v{WA+p}, v[{WT+4*p}:{WT+4*p+3}]")
    I("s_waitcnt lgkmcnt(0)")
    I("s_barrier")
    stamp(3)
    I("v_mul_u32_u24 v44, 1408, v4")
    I("v_lshrrev_b32 v45, 2, v3")
    I("v_mul_u32_u24 v45, 160, v45")
    I("v_add_u32 v44, v44, v45")
    I("v_and_b32 v45, 3, v3")
    I("v_lshl_add_u32 v44, v45, 3, v44")
    I("v_add_u32 v44, 512, v44")
    I(f"v_add_u32 v45, {7*5632}, v44")
    ACC = 212
    for r in range(ACC, ACC+16):
        I(f"v_mov_b32 v{r}, 0")
    BF = [128, 144]
    def rd(s):
        base = 44 if s < 7 else 45
        so = (s if s < 7 else s-7) * 5632
        for t in range(4):
            d = BF[s & 1] + 4*t
            I(f"ds_read_b64_tr_b16 v[{d}:{d+1}], v{base} offset:{so+32*t}")
            I(f"ds_read_b64_tr_b16 v[{d+2}:{d+3}], v{base} offset:{so+32*t+640}")
    rd(0)
    for s in range(14):
        if s < 13:
            rd(s+1)
            I("s_waitcnt lgkmcnt(8)")
        else:
            I("s_waitcnt lgkmcnt(0)")
        for t in range(4):
            d = BF[s & 1] + 4*t
            I(f"v_mfma_f32_16x16x32_bf16 v[{ACC+4*t}:{ACC+4*t+3}], v[{d}:{d+3}], v[{XF+4*s}:{XF+4*s+3}], v[{ACC+4*t}:{ACC+4*t+3}]")
    stamp(4)
    I("v_rcp_f32 v46, v209")
    I("v_cmp_eq_u32 s[44:45], s40, v5")
    I("v_cmp_eq_u32 s[46:47], s41, v5")
    I("s_or_b64 s[48:49], s[44:45], s[46:47]")
    I("v_mov_b32 v47, 0")
    I("v_mov_b32 v48, 256")
    I("v_cndmask_b32 v47, v47, v48, s[46:47]")
    I("v_lshl_add_u32 v47, v4, 4, v47")
    I("s_nop 15")
    for t in range(4):
        I(f"ds_read_b128 v[{16+4*t}:{16+4*t+3}], v47 offset:{64*t}")
    I("s_waitcnt lgkmcnt(0)")
    I("v_mov_b32 v49, 0")
    for t in range(4):
        o = []
        for i in range(4):
            a = ACC + 4*t + i
            xr = 200 + 2*t + (i >> 1)
            if i & 1:
                I(f"v_and_b32 v50, 0xffff0000, v{xr}")
            else:
                I(f"v_lshlrev_b32 v50, 16, v{xr}")
            rne_bf16_as_f32(51, a)
            I("v_add_f32 v51, v50, v51")
            rne_bf16_as_f32(51, 51)
            I("v_sub_f32 v52, v50, v208")
            rne_bf16_as_f32(52, 52)
            I("v_mul_f32 v52, v52, v46")
            rne_bf16_as_f32(52, 52)
            I(f"v_cndmask_b32 v53, v49, v{16+4*t+i}, s[48:49]")
            I("v_add_f32 v52, v52, v53")
            rne_bf16_as_f32(52, 52)
            I(f"v_add_f32 v{54+i}, v51, v52")
        I("v_cvt_pk_bf16_f32 v58, v54, v55")
        I("v_cvt_pk_bf16_f32 v59, v56, v57")
        I(f"buffer_store_dwordx2 v[58:59], v12, s[28:31], 0 offen offset:{32*t}")
        I("s_nop 1")
    stamp(5)
    LBL("K3_done")
    I("s_endpgm")

if __name__ == "__main__":
    if len(sys.argv) > 2: gen.STAMP_WG = int(sys.argv[2])
    gen.GENS = [gen_k1, gen_k2, gen_k3, lambda: descriptor("k1_kernel", 256), lambda: descriptor("k2_kernel", 256), lambda: descriptor("k3_kernel", 256)]
    emit(sys.argv[1], [("k1_kernel", 224, 512, K1_LDS), ("k2_kernel", N_MOE+256, 256, K2_LDS), ("k3_kernel", 224, 256, K3_LDS)])
```

```python
from gen import *
import gen

XB = 114688
K1V4_LDS = 163840
CS_OFF = XB

def dma(voff, srd, soff_reg, m0_reg):
    I(f"s_mov_b32 m0, {m0_reg}")
    I("s_nop 0")
    I(f"buffer_load_dwordx4 {voff}, {srd}, {soff_reg} offen lds")

def gen_k1v4():
    kernel_header("k1_kernel")
    I("s_cmp_ge_u32 s2, 224")
    I("s_cbranch_scc1 K1_done")
    I("s_load_dwordx4 s[4:7], s[0:1], 0")
    I("s_load_dwordx2 s[8:9], s[0:1], 32")
    I("s_load_dwordx2 s[10:11], s[0:1], 80")
    I("s_and_b32 s12, s2, 7")
    I("s_lshl_b32 s12, s12, 1")
    I("s_lshr_b32 s13, s2, 3")
    I("s_and_b32 s13, s13, 1")
    I("s_add_u32 s12, s12, s13")
    I("s_lshr_b32 s14, s2, 4")
    I("v_and_b32 v1, 63, v0")
    I("v_lshrrev_b32 v2, 6, v0")
    I("v_and_b32 v3, 15, v0")
    I("v_bfe_u32 v4, v0, 4, 2")
    I("s_lshl_b32 s15, s12, 7")
    I("v_lshlrev_b32 v5, 4, v2")
    I("v_add3_u32 v5, v5, v3, s15")
    I("v_readfirstlane_b32 s34, v2")
    I("v_lshrrev_b32 v6, 3, v1")
    I("v_and_b32 v7, 7, v1")
    I("v_xor_b32 v7, v7, v6")
    I("v_lshl_add_u32 v6, v2, 3, v6")
    I("v_add_u32 v6, s15, v6")
    I("v_mul_u32_u24 v6, 896, v6")
    I("v_lshl_add_u32 v6, v7, 4, v6")
    I("v_lshrrev_b32 v7, 4, v1")
    I("v_bfe_u32 v8, v2, 1, 1")
    I("v_lshl_add_u32 v8, v8, 2, v7")
    I("v_bfe_u32 v9, v1, 1, 3")
    I("v_xor_b32 v9, v9, v8")
    I("v_lshl_add_u32 v7, v2, 2, v7")
    I("v_mul_u32_u24 v7, 2688, v7")
    I("v_lshl_add_u32 v7, v9, 5, v7")
    I("v_and_b32 v8, 1, v1")
    I("v_lshl_add_u32 v7, v8, 4, v7")
    I("s_mul_i32 s32, s14, 192")
    I("v_add_u32 v7, s32, v7")
    I("v_cmp_gt_u32 vcc, 6, v9")
    I("v_mov_b32 v8, 0x7fffff00")
    I("s_nop 0")
    I("v_cndmask_b32 v7, v8, v7, vcc")
    I("s_waitcnt lgkmcnt(0)")
    srd(16, 4, 5, 2048*896)
    srd(20, 6, 7, 448*2688)
    srd(24, 10, 11, WS_SIZE)
    srd(28, 8, 9, 896)
    stamp_init(); stamp(0)
    I("s_lshl_b32 s35, s34, 10")
    def xdma(j):
        slot = j % 3
        for q in range(2):
            I(f"s_mov_b32 s36, {128*j + q*64*896}")
            I(f"s_add_u32 s37, s35, {XB + slot*16384 + q*8192}")
            dma("v6", "s[16:19]", "s36", "s37")
    def wdma(j):
        for q in range(2):
            n = 2*j + q
            I(f"s_mov_b32 s36, {32*n*2688}")
            I(f"s_add_u32 s37, s35, {8192*n}")
            dma("v7", "s[20:23]", "s36", "s37")
    for j in range(7):
        if j < 3: xdma(j)
        wdma(j)
    stamp(1)
    for r in range(12, 16):
        I(f"v_mov_b32 v{r}, 0x3f803f80")
    ACC = 200
    for r in range(ACC, ACC+36):
        I(f"v_mov_b32 v{r}, 0")
    I("v_and_b32 v8, 7, v3")
    I("v_xor_b32 v8, v8, v4")
    I("v_lshlrev_b32 v8, 4, v8")
    I("v_lshl_add_u32 v9, v2, 4, v3")
    I("v_lshl_add_u32 v8, v9, 7, v8")
    I(f"v_add_u32 v8, {XB}, v8")
    I("v_xor_b32 v9, 64, v8")
    I("v_lshrrev_b32 v10, 2, v3")
    I("v_and_b32 v11, 1, v4")
    I("v_lshl_add_u32 v11, v11, 2, v10")
    I("v_lshl_add_u32 v10, v4, 3, v10")
    I("v_lshlrev_b32 v10, 8, v10")
    I("v_and_b32 v16, 3, v3")
    I("v_lshl_add_u32 v10, v16, 3, v10")
    WADR = 40
    for t in range(6):
        I(f"v_xor_b32 v16, {t}, v11")
        I(f"v_lshl_add_u32 v{WADR+t}, v16, 5, v10")
    I("s_cmp_ge_u32 s34, 6")
    I("s_cselect_b32 s38, 0, s34")
    I("v_xor_b32 v16, s38, v11")
    I(f"v_lshl_add_u32 v{WADR+6}, v16, 5, v10")
    XF = 64
    SETS = [128, 160]
    def rd(s, slot):
        so = (s % 7) * 8192
        R = SETS[slot]
        for t in range(7):
            d = R + 4*t
            I(f"ds_read_b64_tr_b16 v[{d}:{d+1}], v{WADR+t} offset:{so}")
            I(f"ds_read_b64_tr_b16 v[{d+2}:{d+3}], v{WADR+t} offset:{so+1024}")
    def mm(s, slot):
        R = SETS[slot]
        xa = f"v[{XF+4*s}:{XF+4*s+3}]"
        for t in range(6):
            d = R + 4*t
            I(f"v_mfma_f32_16x16x32_bf16 v[{ACC+4*t}:{ACC+4*t+3}], v[{d}:{d+3}], {xa}, v[{ACC+4*t}:{ACC+4*t+3}]")
        I(f"v_mfma_f32_16x16x32_bf16 v[224:227], {xa}, {xa}, v[224:227]")
        I(f"v_mfma_f32_16x16x32_bf16 v[228:231], {xa}, v[12:15], v[228:231]")
        I(f"v_mfma_f32_16x16x32_bf16 v[232:235], v[{R+24}:{R+27}], v[12:15], v[232:235]")
    waits = {0:16, 1:12, 2:10, 3:2, 4:2, 5:2, 6:0}
    def rd_list(s, slot):
        so = (s % 7) * 8192
        R = SETS[slot]
        out = []
        for t in range(7):
            d = R + 4*t
            out.append(f"ds_read_b64_tr_b16 v[{d}:{d+1}], v{WADR+t} offset:{so}")
            out.append(f"ds_read_b64_tr_b16 v[{d+2}:{d+3}], v{WADR+t} offset:{so+1024}")
        return out
    def mm_list(s, slot):
        R = SETS[slot]
        xa = f"v[{XF+4*s}:{XF+4*s+3}]"
        out = []
        for t in range(6):
            d = R + 4*t
            out.append(f"v_mfma_f32_16x16x32_bf16 v[{ACC+4*t}:{ACC+4*t+3}], v[{d}:{d+3}], {xa}, v[{ACC+4*t}:{ACC+4*t+3}]")
        out.append(f"v_mfma_f32_16x16x32_bf16 v[232:235], v[{R+24}:{R+27}], v[12:15], v[232:235]")
        out.append(f"v_mfma_f32_16x16x32_bf16 v[224:227], {xa}, {xa}, v[224:227]")
        out.append(f"v_mfma_f32_16x16x32_bf16 v[228:231], {xa}, v[12:15], v[228:231]")
        return out
    prev = None
    slot = 0
    for j in range(7):
        I(f"s_waitcnt vmcnt({waits[j]})")
        stamp(4+j)
        I("s_barrier")
        if 1 <= j <= 4:
            xdma(j+2)
        xs = j % 3
        I(f"ds_read_b128 v[{XF+8*j}:{XF+8*j+3}], v8 offset:{16384*xs}")
        I(f"ds_read_b128 v[{XF+8*j+4}:{XF+8*j+7}], v9 offset:{16384*xs}")
        for s in (2*j, 2*j+1):
            if s == 7:
                for t in range(7):
                    I(f"v_add_u32 v{WADR+t}, {7*8192}, v{WADR+t}")
            rds = rd_list(s, slot)
            if prev is None:
                for r in rds: I(r)
            else:
                mms = mm_list(*prev)
                for t in range(9):
                    if t < 7: I("s_waitcnt lgkmcnt(12)")
                    I(mms[t])
                    if t < 7:
                        I(rds[2*t]); I(rds[2*t+1])
            prev = (s, slot)
            slot ^= 1
    I("s_waitcnt lgkmcnt(0)")
    for m in mm_list(*prev): I(m)
    I("s_nop 15")
    stamp(2)
    I("s_barrier")
    I("s_cmp_ge_u32 s34, 6")
    I("s_cbranch_scc1 K1_nocs")
    I("v_cmp_eq_u32 vcc, 0, v3")
    I("s_and_saveexec_b64 s[36:37], vcc")
    I("v_lshlrev_b32 v7, 4, v4")
    I("s_lshl_b32 s35, s34, 6")
    I("v_add_u32 v7, s35, v7")
    I(f"v_add_u32 v7, {CS_OFF}, v7")
    I("ds_write_b128 v7, v[232:235]")
    I("s_mov_b64 exec, s[36:37]")
    LBL("K1_nocs")
    I("v_and_b32 v24, 3, v3")
    I("v_cmp_eq_u32 vcc, 1, v24")
    I("s_nop 1")
    I("v_cndmask_b32 v25, v224, v225, vcc")
    I("v_cndmask_b32 v26, v228, v229, vcc")
    I("v_cmp_eq_u32 vcc, 2, v24")
    I("s_nop 1")
    I("v_cndmask_b32 v25, v25, v226, vcc")
    I("v_cndmask_b32 v26, v26, v230, vcc")
    I("v_cmp_eq_u32 vcc, 3, v24")
    I("s_nop 1")
    I("v_cndmask_b32 v25, v25, v227, vcc")
    I("v_cndmask_b32 v26, v26, v231, vcc")
    I("v_lshrrev_b32 v27, 2, v3")
    I("v_lshl_add_u32 v27, v27, 4, v3")
    I("v_lshlrev_b32 v27, 2, v27")
    I("ds_bpermute_b32 v25, v27, v25")
    I("ds_bpermute_b32 v26, v27, v26")
    I("s_waitcnt lgkmcnt(0)")
    I("s_barrier")
    I("v_mov_b32 v28, 0x3b124925")
    I("v_mul_f32 v26, v26, v28")
    I("v_mul_f32 v25, v25, v28")
    I("v_fma_f32 v25, -v26, v26, v25")
    I("v_max_f32 v25, 0, v25")
    rne_bf16_as_f32(26, 26)
    rne_bf16_as_f32(25, 25)
    I("v_add_f32 v25, 0x3727c5ac, v25")
    rne_bf16_as_f32(25, 25)
    I("v_sqrt_f32 v25, v25")
    I("s_nop 0")
    rne_bf16_as_f32(25, 25)
    I("v_rcp_f32 v29, v25")
    I("s_cmp_lg_u32 s14, 0")
    I("s_cbranch_scc1 K1_nostats")
    I("v_cmp_eq_u32 vcc, 0, v4")
    I("s_and_saveexec_b64 s[36:37], vcc")
    I("v_mov_b32 v30, v26")
    I("v_mov_b32 v31, v25")
    I("v_lshlrev_b32 v32, 3, v5")
    I(f"v_add_u32 v32, {WS_STATS}, v32")
    I("buffer_store_dwordx2 v[30:31], v32, s[24:27], 0 offen")
    I("s_mov_b64 exec, s[36:37]")
    I("v_lshlrev_b32 v38, 4, v4")
    RT = 128
    for s in range(14):
        I(f"buffer_load_dwordx4 v[{RT+4*s}:{RT+4*s+3}], v38, s[28:31], 0 offen offset:{64*s}")
    for r in range(40, 44):
        I(f"v_mov_b32 v{r}, 0")
    for r in range(232, 236):
        I(f"v_mov_b32 v{r}, 0")
    I("s_waitcnt vmcnt(0)")
    for s in range(14):
        I(f"v_mfma_f32_16x16x32_bf16 v[40:43], v[{XF+4*s}:{XF+4*s+3}], v[{RT+4*s}:{RT+4*s+3}], v[40:43]")
        I(f"v_mfma_f32_16x16x32_bf16 v[232:235], v[12:15], v[{RT+4*s}:{RT+4*s+3}], v[232:235]")
    I("s_nop 15")
    for i in range(4):
        I(f"v_lshlrev_b32 v33, 4, v4")
        I(f"v_add_u32 v33, {4*i}, v33")
        I(f"ds_bpermute_b32 v{46+i}, v33, v26")
        I(f"ds_bpermute_b32 v{50+i}, v33, v29")
    I("s_waitcnt lgkmcnt(0)")
    for i in range(4):
        I(f"v_fma_f32 v{40+i}, -v{46+i}, v232, v{40+i}")
        I(f"v_mul_f32 v{40+i}, v{40+i}, v{50+i}")
        rne_bf16_as_f32(40+i, 40+i)
    I("v_cmp_eq_u32 vcc, 0, v3")
    I("s_and_saveexec_b64 s[36:37], vcc")
    I("v_lshlrev_b32 v38, 4, v2")
    I("v_lshl_add_u32 v38, v4, 2, v38")
    I("v_add_u32 v38, s15, v38")
    I("v_lshlrev_b32 v38, 2, v38")
    I(f"v_add_u32 v38, {WS_R}, v38")
    I("buffer_store_dwordx4 v[40:43], v38, s[24:27], 0 offen")
    I("s_mov_b64 exec, s[36:37]")
    LBL("K1_nostats")
    I("v_lshlrev_b32 v7, 4, v4")
    I(f"v_add_u32 v7, {CS_OFF}, v7")
    for t in range(6):
        I(f"ds_read_b128 v[{128+4*t}:{128+4*t+3}], v7 offset:{64*t}")
    I("s_mul_i32 s35, s14, 24")
    I("v_add_u32 v46, s35, v4")
    I("s_movk_i32 s38, 9363")
    I("v_sub_f32 v26, 0, v26")
    I("s_waitcnt lgkmcnt(0)")
    for t in range(6):
        I(f"v_add_u32 v47, {4*t}, v46")
        I("v_mul_u32_u24 v48, s38, v47")
        I("v_lshrrev_b32 v48, 16, v48")
        I("v_mul_u32_u24 v49, 7, v48")
        I("v_sub_u32 v49, v47, v49")
        I("v_lshl_add_u32 v48, v48, 11, v5")
        I("v_lshlrev_b32 v48, 6, v48")
        I("v_lshl_add_u32 v48, v49, 3, v48")
        for i in range(4):
            I(f"v_fma_f32 v{ACC+4*t+i}, v26, v{128+4*t+i}, v{ACC+4*t+i}")
            I(f"v_mul_f32 v{ACC+4*t+i}, v{ACC+4*t+i}, v29")
        I(f"v_cvt_pk_bf16_f32 v50, v{ACC+4*t}, v{ACC+4*t+1}")
        I(f"v_cvt_pk_bf16_f32 v51, v{ACC+4*t+2}, v{ACC+4*t+3}")
        I("buffer_store_dwordx2 v[50:51], v48, s[24:27], 0 offen")
        I("v_cmp_eq_u32 vcc, 6, v49")
        I("s_and_saveexec_b64 s[36:37], vcc")
        I("v_lshrrev_b32 v52, 22, v48")
        I("v_lshrrev_b32 v52, 17, v48")
        I("v_cmp_le_u32 vcc, 32, v52")
        I("v_mov_b32 v52, 0")
        I("v_mov_b32 v53, 0x3f80")
        I("v_cndmask_b32 v52, v52, v53, vcc")
        I("v_mov_b32 v53, 0")
        I("buffer_store_dwordx2 v[52:53], v48, s[24:27], 0 offen offset:8")
        I("s_mov_b64 exec, s[36:37]")
        I("s_nop 1")
    stamp(3)
    LBL("K1_done")
    I("s_endpgm")

if __name__ == "__main__":
    from gen2 import gen_k2, N_MOE, K2_LDS
    from gen3 import gen_k3, K3_LDS
    if len(sys.argv) > 2: gen.STAMP_WG = int(sys.argv[2])
    gen.GENS = [gen_k1v4, gen_k2, gen_k3, lambda: descriptor("k1_kernel", 256), lambda: descriptor("k2_kernel", 256), lambda: descriptor("k3_kernel", 256)]
    emit(sys.argv[1], [("k1_kernel", 224, 512, K1V4_LDS), ("k2_kernel", N_MOE+256, 256, K2_LDS), ("k3_kernel", 224, 256, K3_LDS)])
```

```python
from gen import *
import gen

K3_WOB = 57344 + 512
K3V2_LDS = 512 + 57344 + 57344

def dma(voff, srd_, soff_reg, m0_reg):
    I(f"s_mov_b32 m0, {m0_reg}")
    I("s_nop 0")
    I(f"buffer_load_dwordx4 {voff}, {srd_}, {soff_reg} offen lds")

def gen_k3v2():
    kernel_header("k3_kernel")
    I("s_cmp_ge_u32 s2, 224")
    I("s_cbranch_scc1 K3_done")
    I("s_load_dwordx2 s[4:5], s[0:1], 0")
    I("s_load_dwordx2 s[6:7], s[0:1], 16")
    I("s_load_dwordx2 s[8:9], s[0:1], 64")
    I("s_load_dwordx2 s[10:11], s[0:1], 80")
    I("s_and_b32 s12, s2, 31")
    I("s_lshr_b32 s13, s2, 5")
    I("v_and_b32 v1, 63, v0")
    I("v_lshrrev_b32 v2, 6, v0")
    I("v_and_b32 v3, 15, v0")
    I("v_bfe_u32 v4, v0, 4, 2")
    I("v_readfirstlane_b32 s34, v2")
    I("s_waitcnt lgkmcnt(0)")
    I(f"s_add_u32 s14, s10, {WS_SEL}")
    I("s_addc_u32 s15, s11, 0")
    I("s_load_dwordx4 s[40:43], s[14:15], 0")
    srd(16, 4, 5, 2048*896)
    srd(20, 6, 7, 448*896)
    srd(24, 10, 11, WS_SIZE)
    srd(28, 8, 9, 2048*896)
    stamp_init(); stamp(0)
    I("s_lshl_b32 s32, s12, 6")
    I("s_lshl_b32 s33, s13, 7")
    I("v_lshrrev_b32 v6, 3, v1")
    I("v_and_b32 v7, 7, v1")
    I("v_xor_b32 v7, v7, v6")
    I("v_lshl_add_u32 v6, v2, 3, v6")
    I("v_add_u32 v6, s32, v6")
    I("v_mul_u32_u24 v6, 896, v6")
    I("v_lshl_add_u32 v6, v7, 4, v6")
    I(f"v_add_u32 v6, {WS_O}, v6")
    I("v_lshrrev_b32 v7, 3, v1")
    I("v_bfe_u32 v8, v1, 4, 1")
    I("v_and_b32 v9, 1, v2")
    I("v_lshl_add_u32 v8, v9, 1, v8")
    I("v_bfe_u32 v9, v1, 1, 2")
    I("v_xor_b32 v9, v9, v8")
    I("v_lshl_add_u32 v7, v2, 3, v7")
    I("v_mul_u32_u24 v7, 896, v7")
    I("v_lshl_add_u32 v7, v9, 5, v7")
    I("v_and_b32 v8, 1, v1")
    I("v_lshl_add_u32 v7, v8, 4, v7")
    I("v_add_u32 v7, s33, v7")
    I("s_lshl_b32 s35, s34, 10")
    for j in range(7):
        I(f"s_mov_b32 s36, {128*j}")
        I(f"s_add_u32 s37, s35, {512 + 8192*j}")
        dma("v6", "s[24:27]", "s36", "s37")
        I(f"s_mov_b32 s36, {64*896*j}")
        I(f"s_add_u32 s37, s35, {K3_WOB + 8192*j}")
        dma("v7", "s[20:23]", "s36", "s37")
    I("v_and_b32 v5, 3, v2")
    I("v_lshl_add_u32 v5, v5, 4, v3")
    I("v_add_u32 v11, s32, v5")
    I("v_mul_u32_u24 v12, 896, v11")
    I("v_lshl_add_u32 v12, v4, 3, v12")
    I("v_add_u32 v12, s33, v12")
    I("v_lshrrev_b32 v13, 2, v2")
    I("v_lshl_add_u32 v12, v13, 6, v12")
    for t in range(2):
        I(f"buffer_load_dwordx2 v[{200+2*t}:{201+2*t}], v12, s[16:19], 0 offen offset:{32*t}")
    I("v_lshlrev_b32 v14, 3, v11")
    I(f"v_add_u32 v14, {WS_STATS}, v14")
    I("buffer_load_dwordx2 v[208:209], v14, s[24:27], 0 offen")
    stamp(1)
    I("s_waitcnt lgkmcnt(0)")
    I("s_cmp_gt_u32 s34, 1")
    I("s_cbranch_scc1 K3_noy")
    I("s_cmp_eq_u32 s34, 0")
    I("s_cselect_b32 s35, s40, s41")
    I("s_cselect_b32 s36, s42, s43")
    I("s_lshr_b32 s37, s35, 6")
    I("s_cmp_lg_u32 s37, s12")
    I("s_cbranch_scc1 K3_noy")
    I("s_mul_i32 s38, s34, 1792")
    I("s_lshl_b32 s39, s13, 8")
    I("s_add_u32 s38, s38, s39")
    I(f"s_add_u32 s38, s38, {WS_YP}")
    I("v_lshlrev_b32 v14, 2, v1")
    I("v_add_u32 v14, s38, v14")
    I("v_mov_b32 v15, 0")
    for k in range(56):
        I(f"buffer_load_dword v{64+k}, v14, s[24:27], 0 offen")
        I("v_add_u32 v14, 3584, v14")
    I("s_waitcnt vmcnt(0)")
    for k in range(56):
        I(f"v_add_f32 v15, v15, v{64+k}")
    rne_bf16_as_f32(15, 15)
    I("v_mul_f32 v15, s36, v15")
    rne_bf16_as_f32(15, 15)
    I("v_lshlrev_b32 v14, 2, v1")
    I("s_lshl_b32 s39, s34, 8")
    I("v_add_u32 v14, s39, v14")
    I("ds_write_b32 v14, v15")
    LBL("K3_noy")
    I("v_and_b32 v8, 7, v3")
    I("v_xor_b32 v8, v8, v4")
    I("v_lshlrev_b32 v8, 4, v8")
    I("v_lshl_add_u32 v8, v5, 7, v8")
    I("v_add_u32 v8, 512, v8")
    I("v_xor_b32 v9, 64, v8")
    I("v_lshrrev_b32 v10, 2, v3")
    I("v_bfe_u32 v15, v3, 3, 1")
    I("v_and_b32 v16, 1, v4")
    I("v_lshl_add_u32 v15, v16, 1, v15")
    I("v_lshl_add_u32 v10, v4, 3, v10")
    I("v_lshlrev_b32 v10, 7, v10")
    I("v_and_b32 v16, 3, v3")
    I("v_lshl_add_u32 v10, v16, 3, v10")
    I(f"v_add_u32 v10, {K3_WOB}, v10")
    I("v_lshlrev_b32 v17, 1, v13")
    for t in range(2):
        I(f"v_add_u32 v16, {t}, v17")
        I("v_xor_b32 v16, v16, v15")
        I(f"v_lshl_add_u32 v{40+t}, v16, 5, v10")
    ACC = 212
    for r in range(ACC, ACC+8):
        I(f"v_mov_b32 v{r}, 0")
    I("s_waitcnt vmcnt(0) lgkmcnt(0)")
    I("s_barrier")
    stamp(2)
    for half in range(2):
        for s in range(7*half, 7*half+7):
            a = 64 + 4*(s - 7*half)
            I(f"ds_read_b128 v[{a}:{a+3}], v{8 + (s & 1)} offset:{8192*(s>>1)}")
            for t in range(2):
                d = 128 + 8*(s - 7*half) + 4*t
                I(f"ds_read_b64_tr_b16 v[{d}:{d+1}], v{40+t} offset:{4096*s}")
                I(f"ds_read_b64_tr_b16 v[{d+2}:{d+3}], v{40+t} offset:{4096*s+512}")
        for s in range(7*half, 7*half+7):
            I(f"s_waitcnt lgkmcnt({min(15, 5*(7*half+6-s))})")
            a = 64 + 4*(s - 7*half)
            for t in range(2):
                d = 128 + 8*(s - 7*half) + 4*t
                I(f"v_mfma_f32_16x16x32_bf16 v[{ACC+4*t}:{ACC+4*t+3}], v[{d}:{d+3}], v[{a}:{a+3}], v[{ACC+4*t}:{ACC+4*t+3}]")
    stamp(3)
    I("v_rcp_f32 v46, v209")
    I("v_cmp_eq_u32 s[44:45], s40, v11")
    I("v_cmp_eq_u32 s[46:47], s41, v11")
    I("s_or_b64 s[48:49], s[44:45], s[46:47]")
    I("v_mov_b32 v47, 0")
    I("v_mov_b32 v48, 256")
    I("v_cndmask_b32 v47, v47, v48, s[46:47]")
    I("v_lshl_add_u32 v47, v4, 4, v47")
    I("v_lshl_add_u32 v47, v13, 7, v47")
    I("s_nop 7")
    for t in range(2):
        I(f"ds_read_b128 v[{16+4*t}:{16+4*t+3}], v47 offset:{64*t}")
    I("s_waitcnt lgkmcnt(0)")
    I("v_mov_b32 v49, 0")
    for t in range(2):
        for i in range(4):
            a = ACC + 4*t + i
            xr = 200 + 2*t + (i >> 1)
            if i & 1:
                I(f"v_and_b32 v50, 0xffff0000, v{xr}")
            else:
                I(f"v_lshlrev_b32 v50, 16, v{xr}")
            rne_bf16_as_f32(51, a)
            I("v_add_f32 v51, v50, v51")
            rne_bf16_as_f32(51, 51)
            I("v_sub_f32 v52, v50, v208")
            rne_bf16_as_f32(52, 52)
            I("v_mul_f32 v52, v52, v46")
            rne_bf16_as_f32(52, 52)
            I(f"v_cndmask_b32 v53, v49, v{16+4*t+i}, s[48:49]")
            I("v_add_f32 v52, v52, v53")
            rne_bf16_as_f32(52, 52)
            I(f"v_add_f32 v{54+i}, v51, v52")
        I("v_cvt_pk_bf16_f32 v58, v54, v55")
        I("v_cvt_pk_bf16_f32 v59, v56, v57")
        I(f"buffer_store_dwordx2 v[58:59], v12, s[28:31], 0 offen offset:{32*t}")
        I("s_nop 1")
    stamp(4)
    LBL("K3_done")
    I("s_endpgm")

if __name__ == "__main__":
    from gen2 import gen_k2, N_MOE, K2_LDS
    from k1v4 import gen_k1v4, K1V4_LDS
    if len(sys.argv) > 2: gen.STAMP_WG = int(sys.argv[2])
    gen.GENS = [gen_k1v4, gen_k2, gen_k3v2, lambda: descriptor("k1_kernel", 256), lambda: descriptor("k2_kernel", 256), lambda: descriptor("k3_kernel", 256)]
    emit(sys.argv[1], [("k1_kernel", 224, 512, K1V4_LDS), ("k2_kernel", N_MOE+256, 256, K2_LDS), ("k3_kernel", 224, 512, K3V2_LDS)])
```

```python
from gen import *
import gen, struct, math

N_MOE = 56
K2V2_LDS = 60416
VB = 25600

def dma(voff, srd_, soff_reg, m0_reg):
    I(f"s_mov_b32 m0, {m0_reg}")
    I("s_nop 0")
    I(f"buffer_load_dwordx4 {voff}, {srd_}, {soff_reg} offen lds")

def gen_k2v2():
    kernel_header("k2_kernel")
    I(f"s_cmp_ge_u32 s2, {N_MOE+256}")
    I("s_cbranch_scc1 K2_done")
    I("s_load_dwordx2 s[4:5], s[0:1], 0")
    I("s_load_dwordx4 s[8:11], s[0:1], 40")
    I("s_load_dwordx2 s[12:13], s[0:1], 56")
    I("s_load_dwordx2 s[14:15], s[0:1], 80")
    I("v_and_b32 v1, 63, v0")
    I("v_lshrrev_b32 v2, 6, v0")
    I("v_and_b32 v3, 15, v0")
    I("v_bfe_u32 v4, v0, 4, 2")
    I("v_readfirstlane_b32 s34, v2")
    I("s_waitcnt lgkmcnt(0)")
    srd(24, 14, 15, WS_SIZE)
    stamp_init(); stamp(0)
    I(f"s_cmp_lt_u32 s2, {N_MOE}")
    I("s_cbranch_scc1 K2_moe")
    I(f"s_sub_u32 s16, s2, {N_MOE}")
    I("s_and_b32 s17, s16, 7")
    I("s_lshl_b32 s17, s17, 1")
    I("s_bfe_u32 s18, s16, 0x10003")
    I("s_add_u32 s17, s17, s18")
    I("s_lshr_b32 s18, s16, 4")
    I("s_lshl_b32 s19, s18, 7")
    I("s_sub_u32 s20, s19, 256")
    I("s_add_u32 s21, s17, 16")
    I("s_lshl_b32 s21, s21, 17")
    I("v_lshrrev_b32 v5, 2, v1")
    I("v_and_b32 v6, 3, v1")
    I("v_lshrrev_b32 v7, 2, v5")
    I("v_and_b32 v8, 2, v7")
    I("v_xor_b32 v8, v8, v6")
    I("v_and_b32 v9, 1, v7")
    I("v_lshlrev_b32 v9, 1, v9")
    I("v_xor_b32 v9, v9, v6")
    I("v_lshlrev_b32 v8, 4, v8")
    I("v_lshlrev_b32 v9, 4, v9")
    I("s_lshl_b32 s35, s34, 10")
    I("s_lshl_b32 s36, s34, 4")
    def kvdma(which, n):
        I(f"v_add_u32 v10, {128*n}, v5")
        I("v_add_u32 v10, s36, v10")
        I("v_add_u32 v10, s20, v10")
        I("v_max_i32 v10, 0, v10")
        I("v_min_i32 v10, 2047, v10")
        I(f"v_lshl_add_u32 v10, v10, 6, v{8+which}")
        I(f"s_add_u32 s37, s21, {0x200000*which}")
        I(f"s_add_u32 s38, s35, {VB*which + 8192*n}")
        dma("v10", "s[24:27]", "s37", "s38")
    for n in range(3): kvdma(0, n)
    I("s_cmp_lg_u32 s34, 0")
    I("s_cbranch_scc1 K2_nk3")
    kvdma(0, 3)
    LBL("K2_nk3")
    I("v_lshl_add_u32 v12, v2, 4, v3")
    I("v_add_u32 v12, s19, v12")
    I("s_lshl_b32 s22, s17, 11")
    I("v_add_u32 v13, s22, v12")
    I("v_lshlrev_b32 v13, 6, v13")
    I("v_lshl_add_u32 v13, v4, 4, v13")
    I("buffer_load_dwordx4 v[16:19], v13, s[24:27], 0 offen")
    for n in range(3): kvdma(1, n)
    I("s_cmp_lg_u32 s34, 0")
    I("s_cbranch_scc1 K2_nv3")
    kvdma(1, 3)
    LBL("K2_nv3")
    stamp(1)
    I("v_lshrrev_b32 v7, 2, v3")
    I("v_and_b32 v7, 2, v7")
    I("v_xor_b32 v7, v7, v4")
    I("v_lshlrev_b32 v7, 4, v7")
    I("v_lshl_add_u32 v22, v2, 4, v3")
    I("v_lshl_add_u32 v7, v22, 6, v7")
    I("s_lshl_b32 s28, s18, 3")
    I("s_add_u32 s28, s28, s34")
    I("s_sub_i32 s28, 16, s28")
    I("s_max_i32 s28, s28, 0")
    I("v_mov_b32 v23, 0xf149f2ca")
    I("s_cmp_lg_u32 s34, 0")
    I("s_cbranch_scc1 K2_w3")
    I("s_waitcnt vmcnt(4)")
    I("s_branch K2_w3d")
    LBL("K2_w3")
    I("s_waitcnt vmcnt(3)")
    LBL("K2_w3d")
    I("s_barrier")
    stamp(2)
    S = 32
    KF = [104, 108, 112, 116]
    for i in range(3):
        I(f"ds_read_b128 v[{KF[i]}:{KF[i]+3}], v7 offset:{1024*i}")
    for i in range(18):
        if i + 3 < 18:
            I(f"ds_read_b128 v[{KF[(i+3)%4]}:{KF[(i+3)%4]+3}], v7 offset:{1024*(i+3)}")
            I("s_waitcnt lgkmcnt(3)")
        else:
            I(f"s_waitcnt lgkmcnt({17-i})")
        k = KF[i % 4]
        I(f"v_mfma_f32_16x16x32_bf16 v[{S+4*i}:{S+4*i+3}], v[{k}:{k+3}], v[16:19], 0")
    I("s_nop 7")
    stamp(3)
    for r in range(4):
        I(f"v_mov_b32 v{S+68+r}, v23")
    I("s_cmp_eq_u32 s28, 0")
    I("s_cbranch_scc1 K2_noneg")
    for i in range(16):
        I(f"s_cmp_le_u32 s28, {i}")
        I(f"s_cbranch_scc1 K2_noneg")
        for r in range(4):
            I(f"v_mov_b32 v{S+4*i+r}, v23")
    LBL("K2_noneg")
    I("v_lshlrev_b32 v24, 2, v4")
    I("v_sub_u32 v24, v3, v24")
    for r in range(4):
        I(f"v_cmp_gt_i32 vcc, {r}, v24")
        I("s_nop 1")
        I(f"v_cndmask_b32 v{S+r}, v23, v{S+r}, vcc")
        I(f"v_cndmask_b32 v{S+64+r}, v{S+64+r}, v23, vcc")
    I(f"v_max_f32 v25, v{S}, v{S+1}")
    for i in range(2, 68, 2):
        I(f"v_max3_f32 v25, v25, v{S+i}, v{S+i+1}")
    I("ds_swizzle_b32 v26, v25 offset:0x401f")
    I("s_waitcnt lgkmcnt(0)")
    I("v_max_f32 v25, v25, v26")
    I("v_mov_b32 v26, v25")
    I("s_nop 1")
    I("v_permlane32_swap_b32 v25, v26")
    I("v_max_f32 v25, v25, v26")
    cc = (28 ** -0.5) * math.log2(math.e)
    cbits = struct.unpack("<I", struct.pack("<f", cc))[0]
    I(f"s_mov_b32 s29, 0x{cbits:08x}")
    I("v_mul_f32 v25, s29, v25")
    I("v_sub_f32 v25, 0, v25")
    for i in range(68):
        I(f"v_fma_f32 v{S+i}, v{S+i}, s29, v25")
        I(f"v_exp_f32 v{S+i}, v{S+i}")
    for i in range(68, 72):
        I(f"v_mov_b32 v{S+i}, 0")
    for u in range(9):
        for n in range(4):
            I(f"v_cvt_pk_bf16_f32 v{S+8*u+n}, v{S+8*u+2*n}, v{S+8*u+2*n+1}")
    stamp(4)
    I("v_lshrrev_b32 v24, 2, v3")
    I("v_lshl_add_u32 v24, v4, 2, v24")
    I("v_lshl_add_u32 v24, v2, 4, v24")
    I("v_lshlrev_b32 v24, 6, v24")
    I("v_and_b32 v26, 3, v3")
    I("v_lshl_add_u32 v24, v26, 3, v24")
    I(f"v_add_u32 v24, {VB}, v24")
    I("v_and_b32 v26, 1, v4")
    I("v_lshl_add_u32 v27, v26, 5, v24")
    I("v_xor_b32 v26, 1, v26")
    I("v_lshl_add_u32 v28, v26, 5, v24")
    for r in range(20, 24):
        I(f"v_mov_b32 v{r}, 0")
    for r in range(8, 12):
        I(f"v_mov_b32 v{r}, 0")
    I("s_waitcnt vmcnt(0)")
    I("s_barrier")
    stamp(5)
    VF = [104, 112]
    def vrd(u):
        b = VF[u & 1]
        I(f"ds_read_b64_tr_b16 v[{b}:{b+1}], v27 offset:{2048*u}")
        I(f"ds_read_b64_tr_b16 v[{b+2}:{b+3}], v27 offset:{2048*u+1024}")
        I(f"ds_read_b64_tr_b16 v[{b+4}:{b+5}], v28 offset:{2048*u}")
        I(f"ds_read_b64_tr_b16 v[{b+6}:{b+7}], v28 offset:{2048*u+1024}")
    vrd(0)
    for u in range(9):
        if u < 8:
            vrd(u+1)
            I("s_waitcnt lgkmcnt(4)")
        else:
            I("s_waitcnt lgkmcnt(0)")
        b = VF[u & 1]
        I(f"v_mfma_f32_16x16x32_bf16 v[20:23], v[{b}:{b+3}], v[{S+8*u}:{S+8*u+3}], v[20:23]")
        I(f"v_mfma_f32_16x16x32_bf16 v[8:11], v[{b+4}:{b+7}], v[{S+8*u}:{S+8*u+3}], v[8:11]")
    I("s_nop 7")
    stamp(6)
    I("v_add_u32 v24, 48, v3")
    I("v_lshlrev_b32 v24, 2, v24")
    I("ds_bpermute_b32 v25, v24, v8")
    I("s_waitcnt lgkmcnt(0)")
    I("v_rcp_f32 v25, v25")
    I("v_mul_u32_u24 v13, 896, v12")
    I("s_mul_i32 s30, s17, 56")
    I("v_add_u32 v13, s30, v13")
    I("v_lshl_add_u32 v13, v4, 3, v13")
    I(f"v_add_u32 v13, {WS_O}, v13")
    for r in range(4):
        I(f"v_mul_f32 v{20+r}, v{20+r}, v25")
        I(f"v_mul_f32 v{8+r}, v{8+r}, v25")
    I("v_cvt_pk_bf16_f32 v26, v20, v21")
    I("v_cvt_pk_bf16_f32 v27, v22, v23")
    I("v_cvt_pk_bf16_f32 v28, v8, v9")
    I("v_cvt_pk_bf16_f32 v29, v10, v11")
    I("buffer_store_dwordx2 v[26:27], v13, s[24:27], 0 offen")
    I("v_cmp_gt_u32 vcc, 3, v4")
    I("s_and_saveexec_b64 s[36:37], vcc")
    I("buffer_store_dwordx2 v[28:29], v13, s[24:27], 0 offen offset:32")
    stamp(7)
    I("s_branch K2_done")
    LBL("K2_moe")
    srd(16, 4, 5, 2048*896)
    srd(20, 8, 9, 448*3584)
    srd(28, 10, 11, 448*3584)
    srd(56, 12, 13, 1792*896)
    UPB = 28672
    XS = 57344
    GU = XS + 1792
    HS = GU + 512
    I("v_lshlrev_b32 v5, 4, v1")
    I(f"v_add_u32 v5, {WS_R}, v5")
    I("v_add_u32 v6, 4096, v5")
    R0 = 64
    for p in range(8):
        I(f"buffer_load_dwordx4 v[{R0+4*p}:{R0+4*p+3}], v{5 if p < 4 else 6}, s[24:27], 0 offen offset:{1024*(p&3)}")
    I("v_lshrrev_b32 v7, 2, v1")
    I("v_lshl_add_u32 v7, v2, 4, v7")
    I("v_mul_u32_u24 v7, 3584, v7")
    I("v_and_b32 v8, 3, v1")
    I("v_lshl_add_u32 v7, v8, 4, v7")
    I("s_lshl_b32 s36, s2, 6")
    I("v_add_u32 v7, s36, v7")
    I("s_lshl_b32 s54, s34, 10")
    for mat in range(2):
        for n in range(4):
            if n == 3:
                I("s_cmp_ge_u32 s34, 4")
                I(f"s_cbranch_scc1 K2_mskip{mat}")
            I(f"s_mov_b32 s37, {128*3584*n}")
            I(f"s_add_u32 s38, s54, {UPB*mat + 8192*n}")
            dma("v7", "s[20:23]" if mat == 0 else "s[28:31]", "s37", "s38")
            if n == 3: LBL(f"K2_mskip{mat}")
    DN = 96
    I("s_lshl_b32 s39, s2, 5")
    for p in range(4):
        I(f"v_add_u32 v9, {512*p}, v0")
        I("v_mul_u32_u24 v10, 4682, v9")
        I("v_lshrrev_b32 v10, 18, v10")
        I("v_mul_u32_u24 v11, 56, v10")
        I("v_sub_u32 v11, v9, v11")
        I(f"v_mul_u32_u24 v{112+p}, 896, v10")
        I(f"v_lshl_add_u32 v{112+p}, v11, 4, v{112+p}")
        I("v_add_u32 v10, s39, v10")
        I("v_mul_u32_u24 v10, 896, v10")
        I("v_lshl_add_u32 v10, v11, 4, v10")
        I("v_cmp_gt_u32 vcc, 1792, v9")
        I("v_mov_b32 v11, 0x7ffffff0")
        I("s_nop 0")
        I("v_cndmask_b32 v10, v11, v10, vcc")
        I(f"buffer_load_dwordx4 v[{DN+4*p}:{DN+4*p+3}], v10, s[56:59], 0 offen")
    stamp(1)
    I("s_cmp_ge_u32 s34, 4")
    I("s_cbranch_scc1 K2_mw1")
    I("s_waitcnt vmcnt(12)")
    I("s_branch K2_mw2")
    LBL("K2_mw1")
    I("s_waitcnt vmcnt(10)")
    LBL("K2_mw2")
    stamp(2)
    I("v_lshlrev_b32 v10, 2, v1")
    for p in range(8):
        for e in range(4):
            r = R0 + 4*p + e
            I(f"v_add_u32 v11, {256*p+e}, v10")
            I(f"v_or_b32 v{r}, v{r}, v11")
    I(f"v_max_f32 v13, v{R0}, v{R0+1}")
    I(f"v_min_f32 v14, v{R0}, v{R0+1}")
    for r in range(R0+2, R0+32):
        I(f"v_med3_f32 v14, v13, v14, v{r}")
        I(f"v_max_f32 v13, v13, v{r}")
    def merge():
        I("v_min_f32 v17, v13, v15")
        I("v_max_f32 v13, v13, v15")
        I("v_max_f32 v14, v14, v16")
        I("v_max_f32 v14, v14, v17")
    for off in (0x041F, 0x081F, 0x101F, 0x201F, 0x401F):
        I(f"ds_swizzle_b32 v15, v13 offset:0x{off:04x}")
        I(f"ds_swizzle_b32 v16, v14 offset:0x{off:04x}")
        I("s_waitcnt lgkmcnt(0)")
        merge()
    I("v_mov_b32 v15, v13")
    I("v_mov_b32 v16, v14")
    I("s_nop 1")
    I("v_permlane32_swap_b32 v13, v15")
    I("v_permlane32_swap_b32 v14, v16")
    merge()
    I("s_nop 0")
    I("v_readfirstlane_b32 s41, v13")
    I("v_readfirstlane_b32 s42, v14")
    I("s_nop 3")
    I("s_and_b32 s43, s41, 0xffff")
    I("s_and_b32 s44, s42, 0xffff")
    I("s_and_b32 s45, s41, 0xffff0000")
    I("s_and_b32 s46, s42, 0xffff0000")
    I("v_cmp_gt_u32 vcc, 224, v0")
    I("s_and_saveexec_b64 s[48:49], vcc")
    for tok, sidx in ((0, 43), (1, 44)):
        I(f"s_mul_i32 s50, s{sidx}, 896")
        I("v_lshlrev_b32 v11, 2, v0")
        I(f"buffer_load_dword v{16+tok}, v11, s[16:19], s50 offen")
        I(f"s_lshl_b32 s51, s{sidx}, 3")
        I(f"s_add_u32 s51, s51, {WS_STATS}")
        I("v_mov_b32 v12, s51")
        I(f"buffer_load_dwordx2 v[{18+2*tok}:{19+2*tok}], v12, s[24:27], 0 offen")
    I("s_waitcnt vmcnt(0)")
    for tok in range(2):
        m, s = 18+2*tok, 19+2*tok
        I(f"v_rcp_f32 v22, v{s}")
        I(f"v_lshlrev_b32 v23, 16, v{16+tok}")
        I(f"v_and_b32 v24, 0xffff0000, v{16+tok}")
        I(f"v_sub_f32 v23, v23, v{m}")
        I(f"v_sub_f32 v24, v24, v{m}")
        I("v_cvt_pk_bf16_f32 v25, v23, v24")
        I("v_lshlrev_b32 v23, 16, v25")
        I("v_and_b32 v24, 0xffff0000, v25")
        I("v_mul_f32 v23, v23, v22")
        I("v_mul_f32 v24, v24, v22")
        I("v_cvt_pk_bf16_f32 v25, v23, v24")
        I("v_lshlrev_b32 v28, 2, v0")
        I(f"ds_write_b32 v28, v25 offset:{XS+896*tok}")
    I("s_mov_b64 exec, s[48:49]")
    I("s_waitcnt vmcnt(0) lgkmcnt(0)")
    I("s_barrier")
    stamp(3)
    I("s_cmp_ge_u32 s34, 4")
    I("s_cbranch_scc1 K2_mnogu")
    I("v_and_b32 v11, 1, v3")
    I("v_mul_u32_u24 v11, 896, v11")
    I("v_lshl_add_u32 v11, v4, 4, v11")
    I("v_lshrrev_b32 v12, 2, v3")
    I("v_lshl_add_u32 v12, v4, 3, v12")
    I("v_lshlrev_b32 v12, 6, v12")
    I("v_and_b32 v13, 3, v3")
    I("v_lshl_add_u32 v12, v13, 3, v12")
    I("s_lshr_b32 s50, s34, 1")
    I(f"s_mul_i32 s50, s50, {UPB}")
    I("s_and_b32 s51, s34, 1")
    I("s_lshl_b32 s51, s51, 5")
    I("s_add_u32 s50, s50, s51")
    I("v_add_u32 v12, s50, v12")
    for r in range(20, 24):
        I(f"v_mov_b32 v{r}, 0")
    for s in range(14):
        I(f"ds_read_b128 v[{64+8*(s&1)}:{64+8*(s&1)+3}], v11 offset:{XS+64*s}")
        I(f"ds_read_b64_tr_b16 v[{64+8*(s&1)+4}:{64+8*(s&1)+5}], v12 offset:{2048*s}")
        I(f"ds_read_b64_tr_b16 v[{64+8*(s&1)+6}:{64+8*(s&1)+7}], v12 offset:{2048*s+256}")
        I("s_waitcnt lgkmcnt(0)")
        I(f"v_mfma_f32_16x16x32_bf16 v[20:23], v[{64+8*(s&1)}:{64+8*(s&1)+3}], v[{64+8*(s&1)+4}:{64+8*(s&1)+7}], v[20:23]")
    I("s_nop 7")
    rne_bf16_as_f32(20, 20)
    rne_bf16_as_f32(21, 21)
    I("v_cmp_eq_u32 vcc, 0, v4")
    I("s_and_saveexec_b64 s[48:49], vcc")
    I("s_lshl_b32 s50, s34, 6")
    I("v_lshl_add_u32 v13, v3, 2, s50")
    I(f"ds_write_b32 v13, v20 offset:{GU}")
    I(f"ds_write_b32 v13, v21 offset:{GU+256}")
    I("s_mov_b64 exec, s[48:49]")
    LBL("K2_mnogu")
    I("s_waitcnt lgkmcnt(0)")
    I("s_barrier")
    stamp(4)
    for p in range(4):
        if p == 3:
            I("s_cmp_ge_u32 s34, 4")
            I("s_cbranch_scc1 K2_mnd3")
        I(f"ds_write_b128 v{112+p}, v[{DN+4*p}:{DN+4*p+3}]")
        if p == 3: LBL("K2_mnd3")
    I("v_cmp_gt_u32 vcc, 64, v0")
    I("s_and_saveexec_b64 s[48:49], vcc")
    I("s_cbranch_execz K2_moe_r2")
    I("v_lshrrev_b32 v12, 5, v0")
    I("v_lshlrev_b32 v12, 8, v12")
    I("v_and_b32 v13, 31, v0")
    I("v_lshl_add_u32 v13, v13, 2, v12")
    I(f"ds_read_b32 v12, v13 offset:{GU}")
    I(f"ds_read_b32 v14, v13 offset:{GU+128}")
    I("s_waitcnt lgkmcnt(0)")
    I("v_mul_f32 v15, 0xbfb8aa3b, v12")
    I("v_exp_f32 v15, v15")
    I("s_nop 0")
    I("v_add_f32 v15, 1.0, v15")
    I("v_rcp_f32 v15, v15")
    I("s_nop 0")
    I("v_mul_f32 v12, v12, v15")
    rne_bf16_as_f32(12, 12)
    I("v_mul_f32 v12, v12, v14")
    I("v_cvt_pk_bf16_f32 v12, v12, v12")
    I("v_lshlrev_b32 v13, 1, v0")
    I(f"ds_write_b16 v13, v12 offset:{HS}")
    LBL("K2_moe_r2")
    I("s_mov_b64 exec, s[48:49]")
    I("s_waitcnt lgkmcnt(0)")
    I("s_barrier")
    stamp(5)
    I("v_and_b32 v11, 1, v3")
    I("v_lshlrev_b32 v11, 6, v11")
    I("v_lshl_add_u32 v11, v4, 4, v11")
    I(f"ds_read_b128 v[64:67], v11 offset:{HS}")
    I("v_lshrrev_b32 v12, 2, v3")
    I("v_lshl_add_u32 v12, v4, 3, v12")
    I("v_mul_u32_u24 v12, 896, v12")
    I("v_and_b32 v13, 3, v3")
    I("v_lshl_add_u32 v12, v13, 3, v12")
    I("s_lshl_b32 s50, s34, 5")
    I("v_add_u32 v12, s50, v12")
    I("s_mul_i32 s51, s2, 3584")
    I(f"s_add_u32 s51, s51, {WS_YP}")
    I("s_lshl_b32 s52, s34, 6")
    I("s_add_u32 s51, s51, s52")
    I("v_lshl_add_u32 v14, v3, 2, s51")
    I("v_cmp_eq_u32 s[52:53], 0, v4")
    for n in range(4):
        if n == 3:
            I("s_cmp_ge_u32 s34, 4")
            I("s_cbranch_scc1 K2_mnt3")
        I(f"ds_read_b64_tr_b16 v[68:69], v12 offset:{256*n}")
        I(f"ds_read_b64_tr_b16 v[70:71], v12 offset:{256*n+3584}")
        I("s_waitcnt lgkmcnt(0)")
        I("v_mfma_f32_16x16x32_bf16 v[20:23], v[64:67], v[68:71], 0")
        I("s_nop 7")
        I("s_mov_b64 s[48:49], exec")
        I("s_mov_b64 exec, s[52:53]")
        I(f"buffer_store_dword v20, v14, s[24:27], 0 offen offset:{512*n}")
        I(f"buffer_store_dword v21, v14, s[24:27], 0 offen offset:{512*n+1792}")
        I("s_mov_b64 exec, s[48:49]")
        if n == 3: LBL("K2_mnt3")
    stamp(6)
    I("s_cmp_lg_u32 s2, 0")
    I("s_cbranch_scc1 K2_done")
    I("v_cmp_eq_u32 vcc, 0, v0")
    I("s_and_saveexec_b64 s[48:49], vcc")
    I("v_mov_b32 v12, s43")
    I("v_mov_b32 v13, s44")
    for k, sv in ((14, 45), (15, 46)):
        I(f"v_mov_b32 v{k}, s{sv}")
        I(f"v_mul_f32 v{k}, 0xbfb8aa3b, v{k}")
        I(f"v_exp_f32 v{k}, v{k}")
        I("s_nop 0")
        I(f"v_add_f32 v{k}, 1.0, v{k}")
        I(f"v_rcp_f32 v{k}, v{k}")
        I("s_nop 0")
        rne_bf16_as_f32(k, k)
    I(f"v_mov_b32 v11, {WS_SEL}")
    I("buffer_store_dwordx4 v[12:15], v11, s[24:27], 0 offen")
    LBL("K2_done")
    I("s_endpgm")

if __name__ == "__main__":
    from k1v4 import gen_k1v4, K1V4_LDS
    from k3v2 import gen_k3v2, K3V2_LDS
    if len(sys.argv) > 2: gen.STAMP_WG = int(sys.argv[2])
    gen.GENS = [gen_k1v4, gen_k2v2, gen_k3v2, lambda: descriptor("k1_kernel", 256), lambda: descriptor("k2_kernel", 256 if gen.STAMP_WG is not None else 128), lambda: descriptor("k3_kernel", 256)]
    emit(sys.argv[1], [("k1_kernel", 224, 512, K1V4_LDS), ("k2_kernel", N_MOE+256, 512, K2V2_LDS), ("k3_kernel", 224, 512, K3V2_LDS)])
```

```python
from gen import *
import gen

XB = 114688
K1V4_LDS = 163840
CS_OFF = XB

def dma(voff, srd, soff_reg, m0_reg):
    I(f"s_mov_b32 m0, {m0_reg}")
    I("s_nop 0")
    I(f"buffer_load_dwordx4 {voff}, {srd}, {soff_reg} offen lds")

def gen_k1v4():
    kernel_header("k1_kernel")
    I("s_cmp_ge_u32 s2, 224")
    I("s_cbranch_scc1 K1_done")
    I("s_load_dwordx4 s[4:7], s[0:1], 0")
    I("s_load_dwordx2 s[8:9], s[0:1], 32")
    I("s_load_dwordx2 s[10:11], s[0:1], 80")
    I("s_bfe_u32 s12, s2, 0x20001")
    I("s_lshl_b32 s12, s12, 2")
    I("s_bfe_u32 s13, s2, 0x20003")
    I("s_add_u32 s12, s12, s13")
    I("s_and_b32 s14, s2, 1")
    I("s_mul_i32 s14, s14, 7")
    I("s_lshr_b32 s13, s2, 5")
    I("s_add_u32 s14, s14, s13")
    I("v_and_b32 v1, 63, v0")
    I("v_lshrrev_b32 v2, 6, v0")
    I("v_and_b32 v3, 15, v0")
    I("v_bfe_u32 v4, v0, 4, 2")
    I("s_lshl_b32 s15, s12, 7")
    I("v_lshlrev_b32 v5, 4, v2")
    I("v_add3_u32 v5, v5, v3, s15")
    I("v_readfirstlane_b32 s34, v2")
    I("v_lshrrev_b32 v6, 3, v1")
    I("v_and_b32 v7, 7, v1")
    I("v_xor_b32 v7, v7, v6")
    I("v_lshl_add_u32 v6, v2, 3, v6")
    I("v_add_u32 v6, s15, v6")
    I("v_mul_u32_u24 v6, 896, v6")
    I("v_lshl_add_u32 v6, v7, 4, v6")
    I("v_lshrrev_b32 v7, 4, v1")
    I("v_bfe_u32 v8, v2, 1, 1")
    I("v_lshl_add_u32 v8, v8, 2, v7")
    I("v_bfe_u32 v9, v1, 1, 3")
    I("v_xor_b32 v9, v9, v8")
    I("v_lshl_add_u32 v7, v2, 2, v7")
    I("v_mul_u32_u24 v7, 2688, v7")
    I("v_lshl_add_u32 v7, v9, 5, v7")
    I("v_and_b32 v8, 1, v1")
    I("v_lshl_add_u32 v7, v8, 4, v7")
    I("s_mul_i32 s32, s14, 192")
    I("v_add_u32 v7, s32, v7")
    I("v_cmp_gt_u32 vcc, 6, v9")
    I("v_mov_b32 v8, 0x7fffff00")
    I("s_nop 0")
    I("v_cndmask_b32 v7, v8, v7, vcc")
    I("s_waitcnt lgkmcnt(0)")
    srd(16, 4, 5, 2048*896)
    srd(20, 6, 7, 448*2688)
    srd(24, 10, 11, WS_SIZE)
    srd(28, 8, 9, 896)
    stamp_init(); stamp(0)
    I("s_lshl_b32 s35, s34, 10")
    def xdma(j):
        slot = j % 3
        for q in range(2):
            I(f"s_mov_b32 s36, {128*j + q*64*896}")
            I(f"s_add_u32 s37, s35, {XB + slot*16384 + q*8192}")
            dma("v6", "s[16:19]", "s36", "s37")
    def wdma(j):
        for q in range(2):
            n = 2*j + q
            I(f"s_mov_b32 s36, {32*n*2688}")
            I(f"s_add_u32 s37, s35, {8192*n}")
            dma("v7", "s[20:23]", "s36", "s37")
    for j in range(7):
        if j < 3: xdma(j)
        wdma(j)
    stamp(1)
    for r in range(12, 16):
        I(f"v_mov_b32 v{r}, 0x3f803f80")
    ACC = 200
    for r in range(ACC, ACC+36):
        I(f"v_mov_b32 v{r}, 0")
    I("v_and_b32 v8, 7, v3")
    I("v_xor_b32 v8, v8, v4")
    I("v_lshlrev_b32 v8, 4, v8")
    I("v_lshl_add_u32 v9, v2, 4, v3")
    I("v_lshl_add_u32 v8, v9, 7, v8")
    I(f"v_add_u32 v8, {XB}, v8")
    I("v_xor_b32 v9, 64, v8")
    I("v_lshrrev_b32 v10, 2, v3")
    I("v_and_b32 v11, 1, v4")
    I("v_lshl_add_u32 v11, v11, 2, v10")
    I("v_lshl_add_u32 v10, v4, 3, v10")
    I("v_lshlrev_b32 v10, 8, v10")
    I("v_and_b32 v16, 3, v3")
    I("v_lshl_add_u32 v10, v16, 3, v10")
    WADR = 40
    for t in range(6):
        I(f"v_xor_b32 v16, {t}, v11")
        I(f"v_lshl_add_u32 v{WADR+t}, v16, 5, v10")
    I("s_cmp_ge_u32 s34, 6")
    I("s_cselect_b32 s38, 0, s34")
    I("v_xor_b32 v16, s38, v11")
    I(f"v_lshl_add_u32 v{WADR+6}, v16, 5, v10")
    XF = 64
    SETS = [128, 160]
    def rd(s, slot):
        so = (s % 7) * 8192
        R = SETS[slot]
        for t in range(7):
            d = R + 4*t
            I(f"ds_read_b64_tr_b16 v[{d}:{d+1}], v{WADR+t} offset:{so}")
            I(f"ds_read_b64_tr_b16 v[{d+2}:{d+3}], v{WADR+t} offset:{so+1024}")
    def mm(s, slot):
        R = SETS[slot]
        xa = f"v[{XF+4*s}:{XF+4*s+3}]"
        for t in range(6):
            d = R + 4*t
            I(f"v_mfma_f32_16x16x32_bf16 v[{ACC+4*t}:{ACC+4*t+3}], v[{d}:{d+3}], {xa}, v[{ACC+4*t}:{ACC+4*t+3}]")
        I(f"v_mfma_f32_16x16x32_bf16 v[224:227], {xa}, {xa}, v[224:227]")
        I(f"v_mfma_f32_16x16x32_bf16 v[228:231], {xa}, v[12:15], v[228:231]")
        I(f"v_mfma_f32_16x16x32_bf16 v[232:235], v[{R+24}:{R+27}], v[12:15], v[232:235]")
    waits = {0:16, 1:12, 2:10, 3:2, 4:2, 5:2, 6:0}
    def rd_list(s, slot):
        so = (s % 7) * 8192
        R = SETS[slot]
        out = []
        for t in range(7):
            d = R + 4*t
            out.append(f"ds_read_b64_tr_b16 v[{d}:{d+1}], v{WADR+t} offset:{so}")
            out.append(f"ds_read_b64_tr_b16 v[{d+2}:{d+3}], v{WADR+t} offset:{so+1024}")
        return out
    def mm_list(s, slot):
        R = SETS[slot]
        xa = f"v[{XF+4*s}:{XF+4*s+3}]"
        out = []
        for t in range(6):
            d = R + 4*t
            out.append(f"v_mfma_f32_16x16x32_bf16 v[{ACC+4*t}:{ACC+4*t+3}], v[{d}:{d+3}], {xa}, v[{ACC+4*t}:{ACC+4*t+3}]")
        out.append(f"v_mfma_f32_16x16x32_bf16 v[232:235], v[{R+24}:{R+27}], v[12:15], v[232:235]")
        out.append(f"v_mfma_f32_16x16x32_bf16 v[224:227], {xa}, {xa}, v[224:227]")
        out.append(f"v_mfma_f32_16x16x32_bf16 v[228:231], {xa}, v[12:15], v[228:231]")
        return out
    prev = None
    slot = 0
    for j in range(7):
        I(f"s_waitcnt vmcnt({waits[j]})")
        stamp(4+j)
        I("s_barrier")
        if 1 <= j <= 4:
            xdma(j+2)
        xs = j % 3
        I(f"ds_read_b128 v[{XF+8*j}:{XF+8*j+3}], v8 offset:{16384*xs}")
        I(f"ds_read_b128 v[{XF+8*j+4}:{XF+8*j+7}], v9 offset:{16384*xs}")
        for s in (2*j, 2*j+1):
            if s == 7:
                for t in range(7):
                    I(f"v_add_u32 v{WADR+t}, {7*8192}, v{WADR+t}")
            rds = rd_list(s, slot)
            if prev is None:
                for r in rds: I(r)
            else:
                mms = mm_list(*prev)
                for t in range(9):
                    if t < 7: I("s_waitcnt lgkmcnt(12)")
                    I(mms[t])
                    if t < 7:
                        I(rds[2*t]); I(rds[2*t+1])
            prev = (s, slot)
            slot ^= 1
    I("s_waitcnt lgkmcnt(0)")
    for m in mm_list(*prev): I(m)
    I("s_nop 15")
    stamp(2)
    I("s_barrier")
    I("s_cmp_ge_u32 s34, 6")
    I("s_cbranch_scc1 K1_nocs")
    I("v_cmp_eq_u32 vcc, 0, v3")
    I("s_and_saveexec_b64 s[36:37], vcc")
    I("v_lshlrev_b32 v7, 4, v4")
    I("s_lshl_b32 s35, s34, 6")
    I("v_add_u32 v7, s35, v7")
    I(f"v_add_u32 v7, {CS_OFF}, v7")
    I("ds_write_b128 v7, v[232:235]")
    I("s_mov_b64 exec, s[36:37]")
    LBL("K1_nocs")
    I("v_and_b32 v24, 3, v3")
    I("v_cmp_eq_u32 vcc, 1, v24")
    I("s_nop 1")
    I("v_cndmask_b32 v25, v224, v225, vcc")
    I("v_cndmask_b32 v26, v228, v229, vcc")
    I("v_cmp_eq_u32 vcc, 2, v24")
    I("s_nop 1")
    I("v_cndmask_b32 v25, v25, v226, vcc")
    I("v_cndmask_b32 v26, v26, v230, vcc")
    I("v_cmp_eq_u32 vcc, 3, v24")
    I("s_nop 1")
    I("v_cndmask_b32 v25, v25, v227, vcc")
    I("v_cndmask_b32 v26, v26, v231, vcc")
    I("v_lshrrev_b32 v27, 2, v3")
    I("v_lshl_add_u32 v27, v27, 4, v3")
    I("v_lshlrev_b32 v27, 2, v27")
    I("ds_bpermute_b32 v25, v27, v25")
    I("ds_bpermute_b32 v26, v27, v26")
    I("s_waitcnt lgkmcnt(0)")
    I("s_barrier")
    I("v_mov_b32 v28, 0x3b124925")
    I("v_mul_f32 v26, v26, v28")
    I("v_mul_f32 v25, v25, v28")
    I("v_fma_f32 v25, -v26, v26, v25")
    I("v_max_f32 v25, 0, v25")
    rne_bf16_as_f32(26, 26)
    rne_bf16_as_f32(25, 25)
    I("v_add_f32 v25, 0x3727c5ac, v25")
    rne_bf16_as_f32(25, 25)
    I("v_sqrt_f32 v25, v25")
    I("s_nop 0")
    rne_bf16_as_f32(25, 25)
    I("v_rcp_f32 v29, v25")
    I("s_cmp_lg_u32 s14, 0")
    I("s_cbranch_scc1 K1_nostats")
    I("v_cmp_eq_u32 vcc, 0, v4")
    I("s_and_saveexec_b64 s[36:37], vcc")
    I("v_mov_b32 v30, v26")
    I("v_mov_b32 v31, v25")
    I("v_lshlrev_b32 v32, 3, v5")
    I(f"v_add_u32 v32, {WS_STATS}, v32")
    I("buffer_store_dwordx2 v[30:31], v32, s[24:27], 0 offen")
    I("s_mov_b64 exec, s[36:37]")
    I("v_lshlrev_b32 v38, 4, v4")
    RT = 128
    for s in range(14):
        I(f"buffer_load_dwordx4 v[{RT+4*s}:{RT+4*s+3}], v38, s[28:31], 0 offen offset:{64*s}")
    for r in range(40, 44):
        I(f"v_mov_b32 v{r}, 0")
    for r in range(232, 236):
        I(f"v_mov_b32 v{r}, 0")
    I("s_waitcnt vmcnt(0)")
    for s in range(14):
        I(f"v_mfma_f32_16x16x32_bf16 v[40:43], v[{XF+4*s}:{XF+4*s+3}], v[{RT+4*s}:{RT+4*s+3}], v[40:43]")
        I(f"v_mfma_f32_16x16x32_bf16 v[232:235], v[12:15], v[{RT+4*s}:{RT+4*s+3}], v[232:235]")
    I("s_nop 15")
    for i in range(4):
        I(f"v_lshlrev_b32 v33, 4, v4")
        I(f"v_add_u32 v33, {4*i}, v33")
        I(f"ds_bpermute_b32 v{46+i}, v33, v26")
        I(f"ds_bpermute_b32 v{50+i}, v33, v29")
    I("s_waitcnt lgkmcnt(0)")
    for i in range(4):
        I(f"v_fma_f32 v{40+i}, -v{46+i}, v232, v{40+i}")
        I(f"v_mul_f32 v{40+i}, v{40+i}, v{50+i}")
        rne_bf16_as_f32(40+i, 40+i)
    I("v_cmp_eq_u32 vcc, 0, v3")
    I("s_and_saveexec_b64 s[36:37], vcc")
    I("v_lshlrev_b32 v38, 4, v2")
    I("v_lshl_add_u32 v38, v4, 2, v38")
    I("v_add_u32 v38, s15, v38")
    I("v_lshlrev_b32 v38, 2, v38")
    I(f"v_add_u32 v38, {WS_R}, v38")
    I("buffer_store_dwordx4 v[40:43], v38, s[24:27], 0 offen")
    I("s_mov_b64 exec, s[36:37]")
    LBL("K1_nostats")
    I("v_lshlrev_b32 v7, 4, v4")
    I(f"v_add_u32 v7, {CS_OFF}, v7")
    for t in range(6):
        I(f"ds_read_b128 v[{128+4*t}:{128+4*t+3}], v7 offset:{64*t}")
    I("s_mul_i32 s35, s14, 24")
    I("v_add_u32 v46, s35, v4")
    I("s_movk_i32 s38, 9363")
    I("v_sub_f32 v26, 0, v26")
    I("s_waitcnt lgkmcnt(0)")
    for t in range(6):
        I(f"v_add_u32 v47, {4*t}, v46")
        I("v_mul_u32_u24 v48, s38, v47")
        I("v_lshrrev_b32 v48, 16, v48")
        I("v_mul_u32_u24 v49, 7, v48")
        I("v_sub_u32 v49, v47, v49")
        I("v_lshl_add_u32 v48, v48, 11, v5")
        I("v_lshlrev_b32 v48, 6, v48")
        I("v_lshl_add_u32 v48, v49, 3, v48")
        for i in range(4):
            I(f"v_fma_f32 v{ACC+4*t+i}, v26, v{128+4*t+i}, v{ACC+4*t+i}")
            I(f"v_mul_f32 v{ACC+4*t+i}, v{ACC+4*t+i}, v29")
        I(f"v_cvt_pk_bf16_f32 v50, v{ACC+4*t}, v{ACC+4*t+1}")
        I(f"v_cvt_pk_bf16_f32 v51, v{ACC+4*t+2}, v{ACC+4*t+3}")
        I("buffer_store_dwordx2 v[50:51], v48, s[24:27], 0 offen")
        I("v_cmp_eq_u32 vcc, 6, v49")
        I("s_and_saveexec_b64 s[36:37], vcc")
        I("v_lshrrev_b32 v52, 22, v48")
        I("v_lshrrev_b32 v52, 17, v48")
        I("v_cmp_le_u32 vcc, 32, v52")
        I("v_mov_b32 v52, 0")
        I("v_mov_b32 v53, 0x3f80")
        I("v_cndmask_b32 v52, v52, v53, vcc")
        I("v_mov_b32 v53, 0")
        I("buffer_store_dwordx2 v[52:53], v48, s[24:27], 0 offen offset:8")
        I("s_mov_b64 exec, s[36:37]")
        I("s_nop 1")
    stamp(3)
    LBL("K1_done")
    I("s_endpgm")

if __name__ == "__main__":
    from gen2 import gen_k2, N_MOE, K2_LDS
    from gen3 import gen_k3, K3_LDS
    if len(sys.argv) > 2: gen.STAMP_WG = int(sys.argv[2])
    gen.GENS = [gen_k1v4, gen_k2, gen_k3, lambda: descriptor("k1_kernel", 256), lambda: descriptor("k2_kernel", 256), lambda: descriptor("k3_kernel", 256)]
    emit(sys.argv[1], [("k1_kernel", 224, 512, K1V4_LDS), ("k2_kernel", N_MOE+256, 256, K2_LDS), ("k3_kernel", 224, 256, K3_LDS)])
```

```python
from gen import *
import gen

XB = 114688
K1V4_LDS = 163840
CS_OFF = XB

def dma(voff, srd, soff_reg, m0_reg):
    I(f"s_mov_b32 m0, {m0_reg}")
    I("s_nop 0")
    I(f"buffer_load_dwordx4 {voff}, {srd}, {soff_reg} offen lds")

def gen_k1v4():
    kernel_header("k1_kernel")
    I("s_cmp_ge_u32 s2, 256")
    I("s_cbranch_scc1 K1_done")
    I("s_cmp_ge_u32 s2, 224")
    I("s_cbranch_scc1 K1_prefetch")
    I("s_load_dwordx4 s[4:7], s[0:1], 0")
    I("s_load_dwordx2 s[8:9], s[0:1], 32")
    I("s_load_dwordx2 s[10:11], s[0:1], 80")
    I("s_bfe_u32 s12, s2, 0x20001")
    I("s_lshl_b32 s12, s12, 2")
    I("s_bfe_u32 s13, s2, 0x20003")
    I("s_add_u32 s12, s12, s13")
    I("s_and_b32 s14, s2, 1")
    I("s_mul_i32 s14, s14, 7")
    I("s_lshr_b32 s13, s2, 5")
    I("s_add_u32 s14, s14, s13")
    I("v_and_b32 v1, 63, v0")
    I("v_lshrrev_b32 v2, 6, v0")
    I("v_and_b32 v3, 15, v0")
    I("v_bfe_u32 v4, v0, 4, 2")
    I("s_lshl_b32 s15, s12, 7")
    I("v_lshlrev_b32 v5, 4, v2")
    I("v_add3_u32 v5, v5, v3, s15")
    I("v_readfirstlane_b32 s34, v2")
    I("v_lshrrev_b32 v6, 3, v1")
    I("v_and_b32 v7, 7, v1")
    I("v_xor_b32 v7, v7, v6")
    I("v_lshl_add_u32 v6, v2, 3, v6")
    I("v_add_u32 v6, s15, v6")
    I("v_mul_u32_u24 v6, 896, v6")
    I("v_lshl_add_u32 v6, v7, 4, v6")
    I("v_lshrrev_b32 v7, 4, v1")
    I("v_bfe_u32 v8, v2, 1, 1")
    I("v_lshl_add_u32 v8, v8, 2, v7")
    I("v_bfe_u32 v9, v1, 1, 3")
    I("v_xor_b32 v9, v9, v8")
    I("v_lshl_add_u32 v7, v2, 2, v7")
    I("v_mul_u32_u24 v7, 2688, v7")
    I("v_lshl_add_u32 v7, v9, 5, v7")
    I("v_and_b32 v8, 1, v1")
    I("v_lshl_add_u32 v7, v8, 4, v7")
    I("s_mul_i32 s32, s14, 192")
    I("v_add_u32 v7, s32, v7")
    I("v_cmp_gt_u32 vcc, 6, v9")
    I("v_mov_b32 v8, 0x7fffff00")
    I("s_nop 0")
    I("v_cndmask_b32 v7, v8, v7, vcc")
    I("s_waitcnt lgkmcnt(0)")
    srd(16, 4, 5, 2048*896)
    srd(20, 6, 7, 448*2688)
    srd(24, 10, 11, WS_SIZE)
    srd(28, 8, 9, 896)
    stamp_init(); stamp(0)
    I("s_lshl_b32 s35, s34, 10")
    def xdma(j):
        slot = j % 3
        for q in range(2):
            I(f"s_mov_b32 s36, {128*j + q*64*896}")
            I(f"s_add_u32 s37, s35, {XB + slot*16384 + q*8192}")
            dma("v6", "s[16:19]", "s36", "s37")
    def wdma(j):
        for q in range(2):
            n = 2*j + q
            I(f"s_mov_b32 s36, {32*n*2688}")
            I(f"s_add_u32 s37, s35, {8192*n}")
            dma("v7", "s[20:23]", "s36", "s37")
    for j in range(7):
        if j < 3: xdma(j)
        wdma(j)
    stamp(1)
    for r in range(12, 16):
        I(f"v_mov_b32 v{r}, 0x3f803f80")
    ACC = 200
    for r in range(ACC, ACC+36):
        I(f"v_mov_b32 v{r}, 0")
    I("v_and_b32 v8, 7, v3")
    I("v_xor_b32 v8, v8, v4")
    I("v_lshlrev_b32 v8, 4, v8")
    I("v_lshl_add_u32 v9, v2, 4, v3")
    I("v_lshl_add_u32 v8, v9, 7, v8")
    I(f"v_add_u32 v8, {XB}, v8")
    I("v_xor_b32 v9, 64, v8")
    I("v_lshrrev_b32 v10, 2, v3")
    I("v_and_b32 v11, 1, v4")
    I("v_lshl_add_u32 v11, v11, 2, v10")
    I("v_lshl_add_u32 v10, v4, 3, v10")
    I("v_lshlrev_b32 v10, 8, v10")
    I("v_and_b32 v16, 3, v3")
    I("v_lshl_add_u32 v10, v16, 3, v10")
    WADR = 40
    for t in range(6):
        I(f"v_xor_b32 v16, {t}, v11")
        I(f"v_lshl_add_u32 v{WADR+t}, v16, 5, v10")
    I("s_cmp_ge_u32 s34, 6")
    I("s_cselect_b32 s38, 0, s34")
    I("v_xor_b32 v16, s38, v11")
    I(f"v_lshl_add_u32 v{WADR+6}, v16, 5, v10")
    XF = 64
    SETS = [128, 160]
    def rd(s, slot):
        so = (s % 7) * 8192
        R = SETS[slot]
        for t in range(7):
            d = R + 4*t
            I(f"ds_read_b64_tr_b16 v[{d}:{d+1}], v{WADR+t} offset:{so}")
            I(f"ds_read_b64_tr_b16 v[{d+2}:{d+3}], v{WADR+t} offset:{so+1024}")
    def mm(s, slot):
        R = SETS[slot]
        xa = f"v[{XF+4*s}:{XF+4*s+3}]"
        for t in range(6):
            d = R + 4*t
            I(f"v_mfma_f32_16x16x32_bf16 v[{ACC+4*t}:{ACC+4*t+3}], v[{d}:{d+3}], {xa}, v[{ACC+4*t}:{ACC+4*t+3}]")
        I(f"v_mfma_f32_16x16x32_bf16 v[224:227], {xa}, {xa}, v[224:227]")
        I(f"v_mfma_f32_16x16x32_bf16 v[228:231], {xa}, v[12:15], v[228:231]")
        I(f"v_mfma_f32_16x16x32_bf16 v[232:235], v[{R+24}:{R+27}], v[12:15], v[232:235]")
    waits = {0:16, 1:12, 2:10, 3:2, 4:2, 5:2, 6:0}
    def rd_list(s, slot):
        so = (s % 7) * 8192
        R = SETS[slot]
        out = []
        for t in range(7):
            d = R + 4*t
            out.append(f"ds_read_b64_tr_b16 v[{d}:{d+1}], v{WADR+t} offset:{so}")
            out.append(f"ds_read_b64_tr_b16 v[{d+2}:{d+3}], v{WADR+t} offset:{so+1024}")
        return out
    def mm_list(s, slot):
        R = SETS[slot]
        xa = f"v[{XF+4*s}:{XF+4*s+3}]"
        out = []
        for t in range(6):
            d = R + 4*t
            out.append(f"v_mfma_f32_16x16x32_bf16 v[{ACC+4*t}:{ACC+4*t+3}], v[{d}:{d+3}], {xa}, v[{ACC+4*t}:{ACC+4*t+3}]")
        out.append(f"v_mfma_f32_16x16x32_bf16 v[232:235], v[{R+24}:{R+27}], v[12:15], v[232:235]")
        out.append(f"v_mfma_f32_16x16x32_bf16 v[224:227], {xa}, {xa}, v[224:227]")
        out.append(f"v_mfma_f32_16x16x32_bf16 v[228:231], {xa}, v[12:15], v[228:231]")
        return out
    prev = None
    slot = 0
    for j in range(7):
        if j == 1 and len(sys.argv) > 3:
            for q in range(4):
                I(f"s_waitcnt vmcnt({16-q})")
                stamp(11+q)
        I(f"s_waitcnt vmcnt({waits[j]})")
        stamp(4+j)
        I("s_barrier")
        if 1 <= j <= 4:
            xdma(j+2)
        xs = j % 3
        I(f"ds_read_b128 v[{XF+8*j}:{XF+8*j+3}], v8 offset:{16384*xs}")
        I(f"ds_read_b128 v[{XF+8*j+4}:{XF+8*j+7}], v9 offset:{16384*xs}")
        for s in (2*j, 2*j+1):
            if s == 7:
                for t in range(7):
                    I(f"v_add_u32 v{WADR+t}, {7*8192}, v{WADR+t}")
            rds = rd_list(s, slot)
            if prev is None:
                for r in rds: I(r)
            else:
                mms = mm_list(*prev)
                for t in range(9):
                    if t < 7: I("s_waitcnt lgkmcnt(12)")
                    I(mms[t])
                    if t < 7:
                        I(rds[2*t]); I(rds[2*t+1])
            prev = (s, slot)
            slot ^= 1
    I("s_waitcnt lgkmcnt(0)")
    for m in mm_list(*prev): I(m)
    I("s_nop 15")
    stamp(2)
    I("s_barrier")
    I("s_cmp_ge_u32 s34, 6")
    I("s_cbranch_scc1 K1_nocs")
    I("v_cmp_eq_u32 vcc, 0, v3")
    I("s_and_saveexec_b64 s[36:37], vcc")
    I("v_lshlrev_b32 v7, 4, v4")
    I("s_lshl_b32 s35, s34, 6")
    I("v_add_u32 v7, s35, v7")
    I(f"v_add_u32 v7, {CS_OFF}, v7")
    I("ds_write_b128 v7, v[232:235]")
    I("s_mov_b64 exec, s[36:37]")
    LBL("K1_nocs")
    I("v_and_b32 v24, 3, v3")
    I("v_cmp_eq_u32 vcc, 1, v24")
    I("s_nop 1")
    I("v_cndmask_b32 v25, v224, v225, vcc")
    I("v_cndmask_b32 v26, v228, v229, vcc")
    I("v_cmp_eq_u32 vcc, 2, v24")
    I("s_nop 1")
    I("v_cndmask_b32 v25, v25, v226, vcc")
    I("v_cndmask_b32 v26, v26, v230, vcc")
    I("v_cmp_eq_u32 vcc, 3, v24")
    I("s_nop 1")
    I("v_cndmask_b32 v25, v25, v227, vcc")
    I("v_cndmask_b32 v26, v26, v231, vcc")
    I("v_lshrrev_b32 v27, 2, v3")
    I("v_lshl_add_u32 v27, v27, 4, v3")
    I("v_lshlrev_b32 v27, 2, v27")
    I("ds_bpermute_b32 v25, v27, v25")
    I("ds_bpermute_b32 v26, v27, v26")
    I("s_waitcnt lgkmcnt(0)")
    I("s_barrier")
    I("v_mov_b32 v28, 0x3b124925")
    I("v_mul_f32 v26, v26, v28")
    I("v_mul_f32 v25, v25, v28")
    I("v_fma_f32 v25, -v26, v26, v25")
    I("v_max_f32 v25, 0, v25")
    rne_bf16_as_f32(26, 26)
    rne_bf16_as_f32(25, 25)
    I("v_add_f32 v25, 0x3727c5ac, v25")
    rne_bf16_as_f32(25, 25)
    I("v_sqrt_f32 v25, v25")
    I("s_nop 0")
    rne_bf16_as_f32(25, 25)
    I("v_rcp_f32 v29, v25")
    I("s_cmp_lg_u32 s14, 0")
    I("s_cbranch_scc1 K1_nostats")
    I("v_cmp_eq_u32 vcc, 0, v4")
    I("s_and_saveexec_b64 s[36:37], vcc")
    I("v_mov_b32 v30, v26")
    I("v_mov_b32 v31, v25")
    I("v_lshlrev_b32 v32, 3, v5")
    I(f"v_add_u32 v32, {WS_STATS}, v32")
    I("buffer_store_dwordx2 v[30:31], v32, s[24:27], 0 offen")
    I("s_mov_b64 exec, s[36:37]")
    I("v_lshlrev_b32 v38, 4, v4")
    RT = 128
    for s in range(14):
        I(f"buffer_load_dwordx4 v[{RT+4*s}:{RT+4*s+3}], v38, s[28:31], 0 offen offset:{64*s}")
    for r in range(40, 44):
        I(f"v_mov_b32 v{r}, 0")
    for r in range(232, 236):
        I(f"v_mov_b32 v{r}, 0")
    I("s_waitcnt vmcnt(0)")
    for s in range(14):
        I(f"v_mfma_f32_16x16x32_bf16 v[40:43], v[{XF+4*s}:{XF+4*s+3}], v[{RT+4*s}:{RT+4*s+3}], v[40:43]")
        I(f"v_mfma_f32_16x16x32_bf16 v[232:235], v[12:15], v[{RT+4*s}:{RT+4*s+3}], v[232:235]")
    I("s_nop 15")
    for i in range(4):
        I(f"v_lshlrev_b32 v33, 4, v4")
        I(f"v_add_u32 v33, {4*i}, v33")
        I(f"ds_bpermute_b32 v{46+i}, v33, v26")
        I(f"ds_bpermute_b32 v{50+i}, v33, v29")
    I("s_waitcnt lgkmcnt(0)")
    for i in range(4):
        I(f"v_fma_f32 v{40+i}, -v{46+i}, v232, v{40+i}")
        I(f"v_mul_f32 v{40+i}, v{40+i}, v{50+i}")
        rne_bf16_as_f32(40+i, 40+i)
    I("v_cmp_eq_u32 vcc, 0, v3")
    I("s_and_saveexec_b64 s[36:37], vcc")
    I("v_lshlrev_b32 v38, 4, v2")
    I("v_lshl_add_u32 v38, v4, 2, v38")
    I("v_add_u32 v38, s15, v38")
    I("v_lshlrev_b32 v38, 2, v38")
    I(f"v_add_u32 v38, {WS_R}, v38")
    I("buffer_store_dwordx4 v[40:43], v38, s[24:27], 0 offen")
    I("s_mov_b64 exec, s[36:37]")
    LBL("K1_nostats")
    I("v_lshlrev_b32 v7, 4, v4")
    I(f"v_add_u32 v7, {CS_OFF}, v7")
    for t in range(6):
        I(f"ds_read_b128 v[{128+4*t}:{128+4*t+3}], v7 offset:{64*t}")
    I("s_mul_i32 s35, s14, 24")
    I("v_add_u32 v46, s35, v4")
    I("s_movk_i32 s38, 9363")
    I("v_sub_f32 v26, 0, v26")
    I("s_waitcnt lgkmcnt(0)")
    for t in range(6):
        I(f"v_add_u32 v47, {4*t}, v46")
        I("v_mul_u32_u24 v48, s38, v47")
        I("v_lshrrev_b32 v48, 16, v48")
        I("v_mul_u32_u24 v49, 7, v48")
        I("v_sub_u32 v49, v47, v49")
        I("v_lshl_add_u32 v48, v48, 11, v5")
        I("v_lshlrev_b32 v48, 6, v48")
        I("v_lshl_add_u32 v48, v49, 3, v48")
        for i in range(4):
            I(f"v_fma_f32 v{ACC+4*t+i}, v26, v{128+4*t+i}, v{ACC+4*t+i}")
            I(f"v_mul_f32 v{ACC+4*t+i}, v{ACC+4*t+i}, v29")
        I(f"v_cvt_pk_bf16_f32 v50, v{ACC+4*t}, v{ACC+4*t+1}")
        I(f"v_cvt_pk_bf16_f32 v51, v{ACC+4*t+2}, v{ACC+4*t+3}")
        I("buffer_store_dwordx2 v[50:51], v48, s[24:27], 0 offen")
        I("v_cmp_eq_u32 vcc, 6, v49")
        I("s_and_saveexec_b64 s[36:37], vcc")
        I("v_lshrrev_b32 v52, 22, v48")
        I("v_lshrrev_b32 v52, 17, v48")
        I("v_cmp_le_u32 vcc, 32, v52")
        I("v_mov_b32 v52, 0")
        I("v_mov_b32 v53, 0x3f80")
        I("v_cndmask_b32 v52, v52, v53, vcc")
        I("v_mov_b32 v53, 0")
        I("buffer_store_dwordx2 v[52:53], v48, s[24:27], 0 offen offset:8")
        I("s_mov_b64 exec, s[36:37]")
        I("s_nop 1")
    stamp(3)
    I("s_endpgm")
    LBL("K1_prefetch")
    I("s_load_dwordx4 s[4:7], s[0:1], 40")
    I("s_load_dwordx2 s[8:9], s[0:1], 56")
    I("s_sub_u32 s12, s2, 224")
    I("s_mul_i32 s12, s12, 50176")
    I("v_lshlrev_b32 v1, 4, v0")
    I("v_add_u32 v1, s12, v1")
    I("s_waitcnt lgkmcnt(0)")
    srd(16, 4, 5, 448*3584)
    srd(20, 6, 7, 448*3584)
    srd(24, 8, 9, 1792*896)
    for m in range(3):
        for p in range(7):
            if p == 6:
                I("v_cmp_gt_u32 vcc, 64, v0")
                I("s_and_saveexec_b64 s[36:37], vcc")
                I(f"s_cbranch_execz K1_pf{m}")
            I(f"s_mov_b32 s13, {8192*p}")
            I(f"buffer_load_dwordx4 v[{16+4*(7*m+p)}:{16+4*(7*m+p)+3}], v1, s[{16+4*m}:{19+4*m}], s13 offen")
            if p == 6:
                LBL(f"K1_pf{m}")
                I("s_mov_b64 exec, s[36:37]")
    I("s_waitcnt vmcnt(0)")
    LBL("K1_done")
    I("s_endpgm")

if __name__ == "__main__":
    from gen2 import gen_k2, N_MOE, K2_LDS
    from gen3 import gen_k3, K3_LDS
    if len(sys.argv) > 2: gen.STAMP_WG = int(sys.argv[2])
    gen.GENS = [gen_k1v4, gen_k2, gen_k3, lambda: descriptor("k1_kernel", 256), lambda: descriptor("k2_kernel", 256), lambda: descriptor("k3_kernel", 256)]
    emit(sys.argv[1], [("k1_kernel", 224, 512, K1V4_LDS), ("k2_kernel", N_MOE+256, 256, K2_LDS), ("k3_kernel", 224, 256, K3_LDS)])
```

```python
from gen import *
import gen, struct, math

N_MOE = 56
K2V2_LDS = 60416
VB = 25600

def dma(voff, srd_, soff_reg, m0_reg):
    I(f"s_mov_b32 m0, {m0_reg}")
    I("s_nop 0")
    I(f"buffer_load_dwordx4 {voff}, {srd_}, {soff_reg} offen lds")

def gen_k2v2():
    kernel_header("k2_kernel")
    I(f"s_cmp_ge_u32 s2, {N_MOE+256}")
    I("s_cbranch_scc1 K2_done")
    I("s_load_dwordx2 s[4:5], s[0:1], 0")
    I("s_load_dwordx4 s[8:11], s[0:1], 40")
    I("s_load_dwordx2 s[12:13], s[0:1], 56")
    I("s_load_dwordx2 s[14:15], s[0:1], 80")
    I("v_and_b32 v1, 63, v0")
    I("v_lshrrev_b32 v2, 6, v0")
    I("v_and_b32 v3, 15, v0")
    I("v_bfe_u32 v4, v0, 4, 2")
    I("v_readfirstlane_b32 s34, v2")
    I("s_waitcnt lgkmcnt(0)")
    srd(24, 14, 15, WS_SIZE)
    stamp_init(); stamp(0)
    I(f"s_cmp_lt_u32 s2, {N_MOE}")
    I("s_cbranch_scc1 K2_moe")
    I(f"s_sub_u32 s16, s2, {N_MOE}")
    I("s_and_b32 s17, s16, 7")
    I("s_lshl_b32 s17, s17, 1")
    I("s_bfe_u32 s18, s16, 0x10003")
    I("s_add_u32 s17, s17, s18")
    I("s_lshr_b32 s18, s16, 4")
    I("s_lshl_b32 s19, s18, 7")
    I("s_sub_u32 s20, s19, 256")
    I("s_add_u32 s21, s17, 16")
    I("s_lshl_b32 s21, s21, 17")
    I("v_lshrrev_b32 v5, 2, v1")
    I("v_and_b32 v6, 3, v1")
    I("v_lshrrev_b32 v7, 2, v5")
    I("v_and_b32 v8, 2, v7")
    I("v_xor_b32 v8, v8, v6")
    I("v_and_b32 v9, 1, v7")
    I("v_lshlrev_b32 v9, 1, v9")
    I("v_xor_b32 v9, v9, v6")
    I("v_lshlrev_b32 v8, 4, v8")
    I("v_lshlrev_b32 v9, 4, v9")
    I("s_lshl_b32 s35, s34, 10")
    I("s_lshl_b32 s36, s34, 4")
    def kvdma(which, n):
        I(f"v_add_u32 v10, {128*n}, v5")
        I("v_add_u32 v10, s36, v10")
        I("v_add_u32 v10, s20, v10")
        I("v_max_i32 v10, 0, v10")
        I("v_min_i32 v10, 2047, v10")
        I(f"v_lshl_add_u32 v10, v10, 6, v{8+which}")
        I(f"s_add_u32 s37, s21, {0x200000*which}")
        I(f"s_add_u32 s38, s35, {VB*which + 8192*n}")
        dma("v10", "s[24:27]", "s37", "s38")
    for n in range(3): kvdma(0, n)
    I("s_cmp_lg_u32 s34, 0")
    I("s_cbranch_scc1 K2_nk3")
    kvdma(0, 3)
    LBL("K2_nk3")
    I("v_lshl_add_u32 v12, v2, 4, v3")
    I("v_add_u32 v12, s19, v12")
    I("s_lshl_b32 s22, s17, 11")
    I("v_add_u32 v13, s22, v12")
    I("v_lshlrev_b32 v13, 6, v13")
    I("v_lshl_add_u32 v13, v4, 4, v13")
    I("buffer_load_dwordx4 v[16:19], v13, s[24:27], 0 offen")
    for n in range(3): kvdma(1, n)
    I("s_cmp_lg_u32 s34, 0")
    I("s_cbranch_scc1 K2_nv3")
    kvdma(1, 3)
    LBL("K2_nv3")
    stamp(1)
    I("v_lshrrev_b32 v7, 2, v3")
    I("v_and_b32 v7, 2, v7")
    I("v_xor_b32 v7, v7, v4")
    I("v_lshlrev_b32 v7, 4, v7")
    I("v_lshl_add_u32 v22, v2, 4, v3")
    I("v_lshl_add_u32 v7, v22, 6, v7")
    I("s_lshl_b32 s28, s18, 3")
    I("s_add_u32 s28, s28, s34")
    I("s_sub_i32 s28, 16, s28")
    I("s_max_i32 s28, s28, 0")
    I("v_mov_b32 v23, 0xf149f2ca")
    I("s_cmp_lg_u32 s34, 0")
    I("s_cbranch_scc1 K2_w3")
    I("s_waitcnt vmcnt(4)")
    I("s_branch K2_w3d")
    LBL("K2_w3")
    I("s_waitcnt vmcnt(3)")
    LBL("K2_w3d")
    I("s_barrier")
    stamp(2)
    S = 32
    KF = [104, 108, 112, 116]
    for i in range(3):
        I(f"ds_read_b128 v[{KF[i]}:{KF[i]+3}], v7 offset:{1024*i}")
    for i in range(18):
        if i + 3 < 18:
            I(f"ds_read_b128 v[{KF[(i+3)%4]}:{KF[(i+3)%4]+3}], v7 offset:{1024*(i+3)}")
            I("s_waitcnt lgkmcnt(3)")
        else:
            I(f"s_waitcnt lgkmcnt({17-i})")
        k = KF[i % 4]
        I(f"v_mfma_f32_16x16x32_bf16 v[{S+4*i}:{S+4*i+3}], v[{k}:{k+3}], v[16:19], 0")
    I("s_nop 7")
    stamp(3)
    for r in range(4):
        I(f"v_mov_b32 v{S+68+r}, v23")
    I("s_cmp_eq_u32 s28, 0")
    I("s_cbranch_scc1 K2_noneg")
    for i in range(16):
        I(f"s_cmp_le_u32 s28, {i}")
        I(f"s_cbranch_scc1 K2_noneg")
        for r in range(4):
            I(f"v_mov_b32 v{S+4*i+r}, v23")
    LBL("K2_noneg")
    I("v_lshlrev_b32 v24, 2, v4")
    I("v_sub_u32 v24, v3, v24")
    for r in range(4):
        I(f"v_cmp_gt_i32 vcc, {r}, v24")
        I("s_nop 1")
        I(f"v_cndmask_b32 v{S+r}, v23, v{S+r}, vcc")
        I(f"v_cndmask_b32 v{S+64+r}, v{S+64+r}, v23, vcc")
    I(f"v_max_f32 v25, v{S}, v{S+1}")
    for i in range(2, 68, 2):
        I(f"v_max3_f32 v25, v25, v{S+i}, v{S+i+1}")
    I("ds_swizzle_b32 v26, v25 offset:0x401f")
    I("s_waitcnt lgkmcnt(0)")
    I("v_max_f32 v25, v25, v26")
    I("v_mov_b32 v26, v25")
    I("s_nop 1")
    I("v_permlane32_swap_b32 v25, v26")
    I("v_max_f32 v25, v25, v26")
    cc = (28 ** -0.5) * math.log2(math.e)
    cbits = struct.unpack("<I", struct.pack("<f", cc))[0]
    I(f"s_mov_b32 s29, 0x{cbits:08x}")
    I("v_mul_f32 v25, s29, v25")
    I("v_sub_f32 v25, 0, v25")
    for i in range(68):
        I(f"v_fma_f32 v{S+i}, v{S+i}, s29, v25")
        I(f"v_exp_f32 v{S+i}, v{S+i}")
    for i in range(68, 72):
        I(f"v_mov_b32 v{S+i}, 0")
    for u in range(9):
        for n in range(4):
            I(f"v_cvt_pk_bf16_f32 v{S+8*u+n}, v{S+8*u+2*n}, v{S+8*u+2*n+1}")
    stamp(4)
    I("v_lshrrev_b32 v24, 2, v3")
    I("v_lshl_add_u32 v24, v4, 2, v24")
    I("v_lshl_add_u32 v24, v2, 4, v24")
    I("v_lshlrev_b32 v24, 6, v24")
    I("v_and_b32 v26, 3, v3")
    I("v_lshl_add_u32 v24, v26, 3, v24")
    I(f"v_add_u32 v24, {VB}, v24")
    I("v_and_b32 v26, 1, v4")
    I("v_lshl_add_u32 v27, v26, 5, v24")
    I("v_xor_b32 v26, 1, v26")
    I("v_lshl_add_u32 v28, v26, 5, v24")
    for r in range(20, 24):
        I(f"v_mov_b32 v{r}, 0")
    for r in range(8, 12):
        I(f"v_mov_b32 v{r}, 0")
    I("s_waitcnt vmcnt(0)")
    I("s_barrier")
    stamp(5)
    VF = [104, 112]
    def vrd(u):
        b = VF[u & 1]
        I(f"ds_read_b64_tr_b16 v[{b}:{b+1}], v27 offset:{2048*u}")
        I(f"ds_read_b64_tr_b16 v[{b+2}:{b+3}], v27 offset:{2048*u+1024}")
        I(f"ds_read_b64_tr_b16 v[{b+4}:{b+5}], v28 offset:{2048*u}")
        I(f"ds_read_b64_tr_b16 v[{b+6}:{b+7}], v28 offset:{2048*u+1024}")
    vrd(0)
    for u in range(9):
        if u < 8:
            vrd(u+1)
            I("s_waitcnt lgkmcnt(4)")
        else:
            I("s_waitcnt lgkmcnt(0)")
        b = VF[u & 1]
        I(f"v_mfma_f32_16x16x32_bf16 v[20:23], v[{b}:{b+3}], v[{S+8*u}:{S+8*u+3}], v[20:23]")
        I(f"v_mfma_f32_16x16x32_bf16 v[8:11], v[{b+4}:{b+7}], v[{S+8*u}:{S+8*u+3}], v[8:11]")
    I("s_nop 7")
    stamp(6)
    I("v_add_u32 v24, 48, v3")
    I("v_lshlrev_b32 v24, 2, v24")
    I("ds_bpermute_b32 v25, v24, v8")
    I("s_waitcnt lgkmcnt(0)")
    I("v_rcp_f32 v25, v25")
    I("v_mul_u32_u24 v13, 896, v12")
    I("s_mul_i32 s30, s17, 56")
    I("v_add_u32 v13, s30, v13")
    I("v_lshl_add_u32 v13, v4, 3, v13")
    I(f"v_add_u32 v13, {WS_O}, v13")
    for r in range(4):
        I(f"v_mul_f32 v{20+r}, v{20+r}, v25")
        I(f"v_mul_f32 v{8+r}, v{8+r}, v25")
    I("v_cvt_pk_bf16_f32 v26, v20, v21")
    I("v_cvt_pk_bf16_f32 v27, v22, v23")
    I("v_cvt_pk_bf16_f32 v28, v8, v9")
    I("v_cvt_pk_bf16_f32 v29, v10, v11")
    I("buffer_store_dwordx2 v[26:27], v13, s[24:27], 0 offen")
    I("v_cmp_gt_u32 vcc, 3, v4")
    I("s_and_saveexec_b64 s[36:37], vcc")
    I("buffer_store_dwordx2 v[28:29], v13, s[24:27], 0 offen offset:32")
    stamp(7)
    I("s_branch K2_done")
    LBL("K2_moe")
    srd(16, 4, 5, 2048*896)
    srd(20, 8, 9, 448*3584)
    srd(28, 10, 11, 448*3584)
    srd(56, 12, 13, 1792*896)
    UPB = 28672
    XS = 57344
    GU = XS + 1792
    HS = GU + 512
    I("v_lshlrev_b32 v5, 4, v1")
    I(f"v_add_u32 v5, {WS_R}, v5")
    I("v_add_u32 v6, 4096, v5")
    R0 = 64
    for p in range(8):
        I(f"buffer_load_dwordx4 v[{R0+4*p}:{R0+4*p+3}], v{5 if p < 4 else 6}, s[24:27], 0 offen offset:{1024*(p&3)}")
    I("v_lshrrev_b32 v7, 2, v1")
    I("v_lshl_add_u32 v7, v2, 4, v7")
    I("v_mul_u32_u24 v7, 3584, v7")
    I("v_and_b32 v8, 3, v1")
    I("v_lshl_add_u32 v7, v8, 4, v7")
    I("s_lshl_b32 s36, s2, 6")
    I("v_add_u32 v7, s36, v7")
    I("s_lshl_b32 s54, s34, 10")
    for mat in range(2):
        for n in range(4):
            if n == 3:
                I("s_cmp_ge_u32 s34, 4")
                I(f"s_cbranch_scc1 K2_mskip{mat}")
            I(f"s_mov_b32 s37, {128*3584*n}")
            I(f"s_add_u32 s38, s54, {UPB*mat + 8192*n}")
            dma("v7", "s[20:23]" if mat == 0 else "s[28:31]", "s37", "s38")
            if n == 3: LBL(f"K2_mskip{mat}")
    DN = 96
    I("s_lshl_b32 s39, s2, 5")
    for p in range(4):
        I(f"v_add_u32 v9, {512*p}, v0")
        I("v_mul_u32_u24 v10, 4682, v9")
        I("v_lshrrev_b32 v10, 18, v10")
        I("v_mul_u32_u24 v11, 56, v10")
        I("v_sub_u32 v11, v9, v11")
        I(f"v_mul_u32_u24 v{112+p}, 896, v10")
        I(f"v_lshl_add_u32 v{112+p}, v11, 4, v{112+p}")
        I("v_add_u32 v10, s39, v10")
        I("v_mul_u32_u24 v10, 896, v10")
        I("v_lshl_add_u32 v10, v11, 4, v10")
        I("v_cmp_gt_u32 vcc, 1792, v9")
        I("v_mov_b32 v11, 0x7ffffff0")
        I("s_nop 0")
        I("v_cndmask_b32 v10, v11, v10, vcc")
        I(f"buffer_load_dwordx4 v[{DN+4*p}:{DN+4*p+3}], v10, s[56:59], 0 offen")
    stamp(1)
    I("s_cmp_ge_u32 s34, 4")
    I("s_cbranch_scc1 K2_mw1")
    I("s_waitcnt vmcnt(12)")
    I("s_branch K2_mw2")
    LBL("K2_mw1")
    I("s_waitcnt vmcnt(10)")
    LBL("K2_mw2")
    stamp(2)
    I("v_lshlrev_b32 v10, 2, v1")
    for p in range(8):
        for e in range(4):
            r = R0 + 4*p + e
            I(f"v_add_u32 v11, {256*p+e}, v10")
            I(f"v_or_b32 v{r}, v{r}, v11")
    I(f"v_max_f32 v13, v{R0}, v{R0+1}")
    I(f"v_min_f32 v14, v{R0}, v{R0+1}")
    for r in range(R0+2, R0+32):
        I(f"v_med3_f32 v14, v13, v14, v{r}")
        I(f"v_max_f32 v13, v13, v{r}")
    def merge():
        I("v_min_f32 v17, v13, v15")
        I("v_max_f32 v13, v13, v15")
        I("v_max_f32 v14, v14, v16")
        I("v_max_f32 v14, v14, v17")
    for off in (0x041F, 0x081F, 0x101F, 0x201F, 0x401F):
        I(f"ds_swizzle_b32 v15, v13 offset:0x{off:04x}")
        I(f"ds_swizzle_b32 v16, v14 offset:0x{off:04x}")
        I("s_waitcnt lgkmcnt(0)")
        merge()
    I("v_mov_b32 v15, v13")
    I("v_mov_b32 v16, v14")
    I("s_nop 1")
    I("v_permlane32_swap_b32 v13, v15")
    I("v_permlane32_swap_b32 v14, v16")
    merge()
    I("s_nop 0")
    I("v_readfirstlane_b32 s41, v13")
    I("v_readfirstlane_b32 s42, v14")
    I("s_nop 3")
    I("s_and_b32 s43, s41, 0xffff")
    I("s_and_b32 s44, s42, 0xffff")
    I("s_and_b32 s45, s41, 0xffff0000")
    I("s_and_b32 s46, s42, 0xffff0000")
    I("v_cmp_gt_u32 vcc, 224, v0")
    I("s_and_saveexec_b64 s[48:49], vcc")
    for tok, sidx in ((0, 43), (1, 44)):
        I(f"s_mul_i32 s50, s{sidx}, 896")
        I("v_lshlrev_b32 v11, 2, v0")
        I(f"buffer_load_dword v{16+tok}, v11, s[16:19], s50 offen")
        I(f"s_lshl_b32 s51, s{sidx}, 3")
        I(f"s_add_u32 s51, s51, {WS_STATS}")
        I("v_mov_b32 v12, s51")
        I(f"buffer_load_dwordx2 v[{18+2*tok}:{19+2*tok}], v12, s[24:27], 0 offen")
    I("s_waitcnt vmcnt(0)")
    for tok in range(2):
        m, s = 18+2*tok, 19+2*tok
        I(f"v_rcp_f32 v22, v{s}")
        I(f"v_lshlrev_b32 v23, 16, v{16+tok}")
        I(f"v_and_b32 v24, 0xffff0000, v{16+tok}")
        I(f"v_sub_f32 v23, v23, v{m}")
        I(f"v_sub_f32 v24, v24, v{m}")
        I("v_cvt_pk_bf16_f32 v25, v23, v24")
        I("v_lshlrev_b32 v23, 16, v25")
        I("v_and_b32 v24, 0xffff0000, v25")
        I("v_mul_f32 v23, v23, v22")
        I("v_mul_f32 v24, v24, v22")
        I("v_cvt_pk_bf16_f32 v25, v23, v24")
        I("v_lshlrev_b32 v28, 2, v0")
        I(f"ds_write_b32 v28, v25 offset:{XS+896*tok}")
    I("s_mov_b64 exec, s[48:49]")
    I("s_waitcnt vmcnt(0) lgkmcnt(0)")
    I("s_barrier")
    stamp(3)
    I("s_cmp_ge_u32 s34, 4")
    I("s_cbranch_scc1 K2_mnogu")
    I("v_and_b32 v11, 1, v3")
    I("v_mul_u32_u24 v11, 896, v11")
    I("v_lshl_add_u32 v11, v4, 4, v11")
    I("v_lshrrev_b32 v12, 2, v3")
    I("v_lshl_add_u32 v12, v4, 3, v12")
    I("v_lshlrev_b32 v12, 6, v12")
    I("v_and_b32 v13, 3, v3")
    I("v_lshl_add_u32 v12, v13, 3, v12")
    I("s_lshr_b32 s50, s34, 1")
    I(f"s_mul_i32 s50, s50, {UPB}")
    I("s_and_b32 s51, s34, 1")
    I("s_lshl_b32 s51, s51, 5")
    I("s_add_u32 s50, s50, s51")
    I("v_add_u32 v12, s50, v12")
    for r in range(20, 24):
        I(f"v_mov_b32 v{r}, 0")
    for hb in range(2):
        for s in range(7*hb, 7*hb+7):
            b = 32 + 8*(s - 7*hb)
            I(f"ds_read_b128 v[{b}:{b+3}], v11 offset:{XS+64*s}")
            I(f"ds_read_b64_tr_b16 v[{b+4}:{b+5}], v12 offset:{2048*s}")
            I(f"ds_read_b64_tr_b16 v[{b+6}:{b+7}], v12 offset:{2048*s+256}")
        for s in range(7*hb, 7*hb+7):
            b = 32 + 8*(s - 7*hb)
            I(f"s_waitcnt lgkmcnt({min(15, 3*(7*hb+6-s))})")
            I(f"v_mfma_f32_16x16x32_bf16 v[20:23], v[{b}:{b+3}], v[{b+4}:{b+7}], v[20:23]")
    I("s_nop 7")
    rne_bf16_as_f32(20, 20)
    rne_bf16_as_f32(21, 21)
    I("v_cmp_eq_u32 vcc, 0, v4")
    I("s_and_saveexec_b64 s[48:49], vcc")
    I("s_lshl_b32 s50, s34, 6")
    I("v_lshl_add_u32 v13, v3, 2, s50")
    I(f"ds_write_b32 v13, v20 offset:{GU}")
    I(f"ds_write_b32 v13, v21 offset:{GU+256}")
    I("s_mov_b64 exec, s[48:49]")
    LBL("K2_mnogu")
    I("s_waitcnt lgkmcnt(0)")
    I("s_barrier")
    stamp(4)
    for p in range(4):
        if p == 3:
            I("s_cmp_ge_u32 s34, 4")
            I("s_cbranch_scc1 K2_mnd3")
        I(f"ds_write_b128 v{112+p}, v[{DN+4*p}:{DN+4*p+3}]")
        if p == 3: LBL("K2_mnd3")
    I("v_cmp_gt_u32 vcc, 64, v0")
    I("s_and_saveexec_b64 s[48:49], vcc")
    I("s_cbranch_execz K2_moe_r2")
    I("v_lshrrev_b32 v12, 5, v0")
    I("v_lshlrev_b32 v12, 8, v12")
    I("v_and_b32 v13, 31, v0")
    I("v_lshl_add_u32 v13, v13, 2, v12")
    I(f"ds_read_b32 v12, v13 offset:{GU}")
    I(f"ds_read_b32 v14, v13 offset:{GU+128}")
    I("s_waitcnt lgkmcnt(0)")
    I("v_mul_f32 v15, 0xbfb8aa3b, v12")
    I("v_exp_f32 v15, v15")
    I("s_nop 0")
    I("v_add_f32 v15, 1.0, v15")
    I("v_rcp_f32 v15, v15")
    I("s_nop 0")
    I("v_mul_f32 v12, v12, v15")
    rne_bf16_as_f32(12, 12)
    I("v_mul_f32 v12, v12, v14")
    I("v_cvt_pk_bf16_f32 v12, v12, v12")
    I("v_lshlrev_b32 v13, 1, v0")
    I(f"ds_write_b16 v13, v12 offset:{HS}")
    LBL("K2_moe_r2")
    I("s_mov_b64 exec, s[48:49]")
    I("s_waitcnt lgkmcnt(0)")
    I("s_barrier")
    stamp(5)
    I("v_and_b32 v11, 1, v3")
    I("v_lshlrev_b32 v11, 6, v11")
    I("v_lshl_add_u32 v11, v4, 4, v11")
    I(f"ds_read_b128 v[64:67], v11 offset:{HS}")
    I("v_lshrrev_b32 v12, 2, v3")
    I("v_lshl_add_u32 v12, v4, 3, v12")
    I("v_mul_u32_u24 v12, 896, v12")
    I("v_and_b32 v13, 3, v3")
    I("v_lshl_add_u32 v12, v13, 3, v12")
    I("s_lshl_b32 s50, s34, 5")
    I("v_add_u32 v12, s50, v12")
    I("s_mul_i32 s51, s2, 3584")
    I(f"s_add_u32 s51, s51, {WS_YP}")
    I("s_lshl_b32 s52, s34, 6")
    I("s_add_u32 s51, s51, s52")
    I("v_lshl_add_u32 v14, v3, 2, s51")
    I("v_cmp_eq_u32 s[52:53], 0, v4")
    for n in range(4):
        if n == 3:
            I("s_cmp_ge_u32 s34, 4")
            I("s_cbranch_scc1 K2_mnt3")
        I(f"ds_read_b64_tr_b16 v[68:69], v12 offset:{256*n}")
        I(f"ds_read_b64_tr_b16 v[70:71], v12 offset:{256*n+3584}")
        I("s_waitcnt lgkmcnt(0)")
        I("v_mfma_f32_16x16x32_bf16 v[20:23], v[64:67], v[68:71], 0")
        I("s_nop 7")
        I("s_mov_b64 s[48:49], exec")
        I("s_mov_b64 exec, s[52:53]")
        I(f"buffer_store_dword v20, v14, s[24:27], 0 offen offset:{512*n}")
        I(f"buffer_store_dword v21, v14, s[24:27], 0 offen offset:{512*n+1792}")
        I("s_mov_b64 exec, s[48:49]")
        if n == 3: LBL("K2_mnt3")
    stamp(6)
    I("s_cmp_lg_u32 s2, 0")
    I("s_cbranch_scc1 K2_done")
    I("v_cmp_eq_u32 vcc, 0, v0")
    I("s_and_saveexec_b64 s[48:49], vcc")
    I("v_mov_b32 v12, s43")
    I("v_mov_b32 v13, s44")
    for k, sv in ((14, 45), (15, 46)):
        I(f"v_mov_b32 v{k}, s{sv}")
        I(f"v_mul_f32 v{k}, 0xbfb8aa3b, v{k}")
        I(f"v_exp_f32 v{k}, v{k}")
        I("s_nop 0")
        I(f"v_add_f32 v{k}, 1.0, v{k}")
        I(f"v_rcp_f32 v{k}, v{k}")
        I("s_nop 0")
        rne_bf16_as_f32(k, k)
    I(f"v_mov_b32 v11, {WS_SEL}")
    I("buffer_store_dwordx4 v[12:15], v11, s[24:27], 0 offen")
    LBL("K2_done")
    I("s_endpgm")

if __name__ == "__main__":
    from k1v4 import gen_k1v4, K1V4_LDS
    from k3v2 import gen_k3v2, K3V2_LDS
    if len(sys.argv) > 2: gen.STAMP_WG = int(sys.argv[2])
    gen.GENS = [gen_k1v4, gen_k2v2, gen_k3v2, lambda: descriptor("k1_kernel", 256), lambda: descriptor("k2_kernel", 256 if gen.STAMP_WG is not None else 128), lambda: descriptor("k3_kernel", 256)]
    emit(sys.argv[1], [("k1_kernel", 256, 512, K1V4_LDS), ("k2_kernel", N_MOE+256, 512, K2V2_LDS), ("k3_kernel", 224, 512, K3V2_LDS)])
```
